```python
import torch

def _softmax(x, axis=-1):
    return torch.softmax(x, dim=axis)
def _gelu(x):
    return torch.nn.functional.gelu(x, approximate="tanh")
def _silu(x):
    return torch.nn.functional.silu(x)
def _sigmoid(x):
    return torch.sigmoid(x)
def _layernorm(x, axis=-1, eps=1e-5):
    m = x.mean(dim=axis, keepdim=True)
    v = x.var(dim=axis, keepdim=True, unbiased=False)
    return (x - m) / torch.sqrt(v + eps)
def _scatter_add(tgt, idx, src, axis=0):
    return tgt.clone().index_add_(axis, idx, src)
def _segment_sum(src, seg, n):
    out = torch.zeros((n,) + src.shape[1:], dtype=src.dtype)
    return out.index_add_(0, seg, src)
def _pad(x, pw):
    flat = tuple(v for pair in reversed(pw) for v in pair)
    return torch.nn.functional.pad(x, flat)

kernel_name = 'standalone__weight_only_int_quip__prompt'

def setup_inputs():

    _w = (lambda a: (lambda t: t.to(torch.bfloat16) if t.is_floating_point() else t)(torch.as_tensor(a)))
    B, S, D, F = 1, 2048, 640, 1536
    G = 128 if 128 > 0 else D
    D = (D // G) * G
    ng = D // G
    bits = 4 if 4 > 0 else 4
    qmax = 1 << bits
    qw = torch.randint(0, qmax, (D, F)).to(torch.int32)
    U, _ = (lambda *_a, **_k: torch.linalg.qr(*[torch.as_tensor(_x).float() for _x in _a], **_k))((lambda *s: torch.randn(*s, dtype=torch.bfloat16) * 0.05)(D, D))
    V, _ = (lambda *_a, **_k: torch.linalg.qr(*[torch.as_tensor(_x).float() for _x in _a], **_k))((lambda *s: torch.randn(*s, dtype=torch.bfloat16) * 0.05)(F, F))
    return {
        "x": _w((lambda *s: torch.randn(*s, dtype=torch.bfloat16) * 0.05)(B, S, D)),
        "qw": _w(qw),
        "scales": _w(torch.abs((lambda *s: torch.randn(*s, dtype=torch.bfloat16) * 0.05)(ng, F)) * 0.02 + 0.005),
        "zeros": _w(torch.full((ng, F), qmax / 2.0, dtype=float)),
        "U": _w(U.to(float)),
        "V": _w(V.to(float)),
    }

def reference(x, qw, scales, zeros, U, V):
    B, S, D = x.shape
    ng, F = scales.shape
    G = D // ng
    s = (lambda x, n, axis: torch.repeat_interleave(x, n, dim=axis))(scales, G, axis=0)
    z = (lambda x, n, axis: torch.repeat_interleave(x, n, dim=axis))(zeros, G, axis=0)
    wq = ((lambda x, dt: x.to(dt))(qw, x.dtype) - z) * s
    xr = torch.einsum("bsd,de->bse", x, U)
    h  = torch.einsum("bse,ef->bsf", xr, wq)
    y  = torch.einsum("bsf,fg->bsg", h, V)
    return y
```

```python
import sys
KN = "standalone__weight_only_int_quip__prompt_kernel"
WQ, TF, XF, FL, ST = 0x0, 0x200000, 0x400000, 0x700000, 0x780000
WS_BYTES = 0x800000

class Asm:
    def __init__(s, opt):
        s.L = []; s.vm = []; s.lg = []; s.opt = opt; s.nst = 0; s.uid = 0
    def __call__(s, t):
        for x in t.split("\n"):
            x = x.strip()
            if x: s.L.append(x if x.endswith(":") else "    " + x)
    def vmi(s, t, tag): s(t); s.vm.append(tag)
    def lgi(s, t, tag): s(t); s.lg.append(tag)
    def _n(s, q, tags):
        idx = [i for i, t in enumerate(q) if t in tags]
        if not idx: return None
        n = len(q) - 1 - max(idx)
        del q[:max(idx) + 1]
        return n
    def wvm(s, *tags):
        n = s._n(s.vm, tags)
        if n is not None: s("s_waitcnt vmcnt(%d)" % min(n, 63))
    def wlg(s, *tags):
        n = s._n(s.lg, tags)
        if n is not None: s("s_waitcnt lgkmcnt(%d)" % min(n, 15))
    def wall(s, vm=True, lg=True):
        s("s_waitcnt" + (" vmcnt(0)" if vm else "") + (" lgkmcnt(0)" if lg else ""))
        if vm: s.vm = []
        if lg: s.lg = []
    def stamp(s, i):
        if s.opt.get("stamps"):
            s("s_memrealtime s[%d:%d]" % (64 + 2*i, 65 + 2*i)); s.wall(vm=False)
    def label(s, b): s.uid += 1; return "L_%s_%d" % (b, s.uid)
    def text(s): return "\n".join(s.L) + "\n"

def srd(a, d, lo, nbytes):
    a("s_mov_b32 s%d, s%d\ns_and_b32 s%d, s%d, 0xffff\ns_mov_b32 s%d, 0x%x\ns_mov_b32 s%d, 0x20000" % (d, lo, d+1, lo+1, d+2, nbytes, d+3))

def prologue(a, nwg, end):
    a("s_cmp_ge_u32 s2, %d\ns_cbranch_scc1 %s" % (nwg, end))
    if a.opt.get("stamps"):
        for i in range(8): a("s_mov_b64 s[%d:%d], 0" % (64+2*i, 65+2*i))
    a.stamp(0)
    a("s_load_dwordx16 s[4:19], s[0:1], 0\ns_load_dwordx2 s[20:21], s[0:1], 64")
    a("v_lshrrev_b32 v2, 6, v0\nv_and_b32 v1, 63, v0\ns_and_b32 s45, s2, 7\nv_readfirstlane_b32 s44, v2\ns_lshr_b32 s46, s2, 3")
    a("v_lshlrev_b32 v10, 4, v1")
    a("s_waitcnt lgkmcnt(0)")
    srd(a, 24, 20, WS_BYTES)

def write_stamps(a, kidx):
    if not a.opt.get("stamps"): return
    a.stamp(7)
    l = a.label("nost")
    a("s_cmp_lg_u32 s44, 0\ns_cbranch_scc1 %s" % l)
    a("s_getreg_b32 s50, hwreg(HW_REG_XCC_ID)\ns_and_b32 s65, s50, 15")
    a("s_lshl_b32 s50, s2, 6\ns_add_u32 s50, s50, 0x%x" % (ST + kidx*0x4000))
    a("v_mov_b32 v2, 0")
    for i in range(4):
        for k in range(4): a("v_mov_b32 v%d, s%d" % (4+k, 64+4*i+k))
        a("buffer_store_dwordx4 v[4:7], v2, s[24:27], s50 offen offset:%d\ns_nop 1" % (16*i))
    a("s_waitcnt vmcnt(0)\n%s:" % l)

def t_coords(a):
    a("s_cmp_ge_u32 s45, 3\ns_cselect_b32 s50, 1, 0\ns_mul_i32 s51, s50, 3\ns_sub_u32 s51, s45, s51")
    a("s_lshl_b32 s47, s50, 2\ns_lshr_b32 s52, s46, 3\ns_add_u32 s47, s47, s52")
    a("s_lshl_b32 s48, s51, 3\ns_and_b32 s52, s46, 7\ns_add_u32 s48, s48, s52")

DL = 131072
def stage_d_loads(a):
    srd(a, 28, 6, 640*1536*4); srd(a, 36, 8, 5*1536*2); srd(a, 40, 10, 5*1536*2)
    a("v_lshrrev_b32 v2, 4, v1\ns_mul_i32 s50, s44, 20\nv_add_u32 v2, s50, v2\nv_and_b32 v3, 15, v1")
    a("s_mul_i32 s51, s47, %d\ns_lshl_b32 s52, s48, 8\ns_add_u32 s51, s51, s52" % (80*6144))
    a("s_mul_i32 s52, s44, 5120\ns_add_u32 s52, s52, %d\ns_movk_i32 s53, 6144" % DL)
    for p in range(5):
        a("v_add_u32 v4, %d, v2\nv_and_b32 v5, 15, v4\nv_xor_b32 v5, v5, v3\nv_mul_u32_u24 v4, s53, v4\nv_lshl_add_u32 v4, v5, 4, v4" % (4*p))
        a("s_add_u32 m0, s52, %d\ns_nop 0" % (1024*p))
        a.vmi("buffer_load_dwordx4 v4, s[28:31], s51 offen lds", "qw")
    a("v_lshrrev_b32 v2, 4, v1\nv_lshlrev_b32 v2, 4, v2")
    a("s_and_b32 s52, s44, 1\ns_lshl_b32 s52, s52, 6\ns_lshl_b32 s53, s48, 7\ns_add_u32 s52, s52, s53")
    for u in range(3):
        a("s_lshr_b32 s53, s44, 1\ns_add_u32 s53, s53, %d\ns_min_u32 s53, s53, 4\ns_mul_i32 s54, s47, 5\ns_add_u32 s53, s53, s54\ns_lshr_b32 s53, s53, 3" % (2*u))
        a("s_mul_i32 s53, s53, 3072\ns_add_u32 s53, s53, s52")
        a.vmi("buffer_load_dwordx4 v[%d:%d], v2, s[36:39], s53 offen" % (128+8*u, 131+8*u), "sz")
        a.vmi("buffer_load_dwordx4 v[%d:%d], v2, s[40:43], s53 offen" % (132+8*u, 135+8*u), "sz")

def stage_d_compute(a, sc):
    a.wvm("qw", "sz"); a("s_barrier")
    a("v_and_b32 v2, 15, v1\nv_lshrrev_b32 v3, 4, v1\nv_lshlrev_b32 v3, 1, v3\ns_and_b32 s50, s44, 1\ns_lshl_b32 s50, s50, 3\nv_add_u32 v3, s50, v3")
    a("v_xor_b32 v4, v3, v2\nv_xor_b32 v5, 1, v4\ns_lshr_b32 s50, s44, 1\ns_lshl_b32 s50, s50, 12\ns_add_u32 s50, s50, %d" % DL)
    a("v_lshlrev_b32 v2, 8, v2\nv_add_u32 v2, s50, v2\nv_lshl_add_u32 v4, v4, 4, v2\nv_lshl_add_u32 v5, v5, 4, v2")
    a("s_mul_i32 s50, s47, 5\ns_lshr_b32 s51, s44, 1\ns_add_u32 s50, s50, s51\ns_mul_i32 s50, s50, 48\ns_lshl_b32 s51, s48, 1\ns_add_u32 s50, s50, s51")
    a("s_and_b32 s51, s44, 1\ns_add_u32 s50, s50, s51\ns_lshl_b32 s50, s50, 10\ns_add_u32 s50, s50, %d" % WQ)
    skip = a.label("dskip")
    for u in range(3):
        if u == 2: a("s_cmp_ge_u32 s44, 2\ns_cbranch_scc1 %s" % skip)
        q = 16 + 8*u
        a.lgi("ds_read_b128 v[%d:%d], v4 offset:%d" % (q, q+3, 8192*u), "dq%d" % u)
        a.lgi("ds_read_b128 v[%d:%d], v5 offset:%d" % (q+4, q+7, 8192*u), "dq%d" % u)
        s0, z0, t = 128+8*u, 132+8*u, 48
        for k in range(4):
            a("v_lshlrev_b32 v%d, 16, v%d\nv_and_b32 v%d, 0xffff0000, v%d" % (t+2*k, s0+k, t+2*k+1, s0+k))
            a("v_lshlrev_b32 v%d, 16, v%d\nv_and_b32 v%d, 0xffff0000, v%d" % (t+8+2*k, z0+k, t+8+2*k+1, z0+k))
        a.wlg("dq%d" % u)
        for k in range(8): a("v_cvt_f32_i32 v%d, v%d" % (q+k, q+k))
        for k in range(8): a("v_sub_f32 v%d, v%d, v%d" % (q+k, q+k, t+8+k))
        for k in range(8): a("v_mul_f32 v%d, v%d, v%d" % (q+k, q+k, t+k))
        o = 64 + 4*u
        for k in range(4): a("v_cvt_pk_bf16_f32 v%d, v%d, v%d" % (o+k, q+2*k, q+2*k+1))
        a("s_add_u32 s51, s50, %d" % (u*2*48*1024))
        a("buffer_store_dwordx4 v[%d:%d], v10, s[24:27], s51 offen%s" % (o, o+3, sc))
        if u < 2: a.vm.append("dst")
    a("%s:" % skip)

RV, NA = 8, 4
def t_setup(a):
    srd(a, 32, 14, 1536*1536*2)
    a("v_lshrrev_b32 v6, 3, v1\nv_and_b32 v7, 7, v1\nv_lshrrev_b32 v8, 2, v1\nv_and_b32 v8, 4, v8\nv_xor_b32 v7, v7, v8")
    a("s_movk_i32 s50, 3072\nv_mul_u32_u24 v6, s50, v6\nv_lshl_add_u32 v2, v7, 4, v6")
    for p in range(1, 4): a("v_add_u32 v%d, %d, v2" % (2+p, p*(24576-1024)))
    a("v_lshrrev_b32 v11, 4, v1\nv_lshlrev_b32 v11, 3, v11\nv_bfe_u32 v12, v1, 2, 2\nv_add_u32 v11, v11, v12\nv_lshlrev_b32 v11, 7, v11")
    a("v_and_b32 v12, 3, v1\nv_lshrrev_b32 v13, 1, v1\nv_and_b32 v13, 4, v13\nv_xor_b32 v12, v12, v13\nv_lshl_add_u32 v11, v12, 4, v11")
    a("s_mul_i32 s53, s44, %d" % (RV*4096))
    for b in range(4):
        a("s_add_u32 s50, s44, %d\ns_and_b32 s51, s50, 1\ns_lshl_b32 s51, s51, 3\ns_add_u32 s51, s51, s53\ns_and_b32 s50, s50, 2\ns_lshl_b32 s50, s50, 5" % b)
        a("v_xor_b32 v%d, s50, v11\nv_add_u32 v%d, s51, v%d" % (6+b, 6+b, 6+b))
    a("s_mul_i32 s55, s44, %d\ns_lshl_b32 s50, s48, 7\ns_add_u32 s55, s55, s50" % (12*32*3072))
    a("s_mul_i32 s56, s47, %d\ns_mul_i32 s50, s44, %d\ns_add_u32 s56, s56, s50\ns_add_u32 s56, s56, %d" % (5*48*1024, 12*1024, WQ))
    a("s_mov_b32 s57, s53")
def t_vload(a, s):
    a("s_add_u32 m0, s57, %d\ns_add_u32 s50, s55, %d" % ((s % RV)*4096, s*32*3072))
    for p in range(4):
        a.vmi("buffer_load_dwordx4 v%d, s[32:35], s50 offen offset:%d lds" % (2+p, 1024*p), "V%d" % s)
def t_aload(a, s, sc):
    for b in range(5):
        r = (s % NA)*20 + 4*b
        a("s_add_u32 s50, s56, %d" % (b*48*1024 + s*1024))
        a.vmi("buffer_load_dwordx4 a[%d:%d], v10, s[24:27], s50 offen%s" % (r, r+3, sc), "A%d" % s)
def t_bread(a, s, b, t):
    r = 96 + (s & 1)*16 + 4*b + 2*t
    a.lgi("ds_read_b64_tr_b16 v[%d:%d], v%d offset:%d" % (r, r+1, 6+b, (s % RV)*4096 + t*512), "B%d" % s)
def stage_t_main(a, ldsc, stsc, vdone):
    ACC = 16
    for s in range(RV):
        if s >= vdone: t_vload(a, s)
        if s < NA: t_aload(a, s, ldsc)
    a.wvm("V0")
    for b in range(4):
        for t in range(2): t_bread(a, 0, b, t)
    for s in range(12):
        a.wvm("A%d" % s, "V%d" % (s+1)); a.wlg("B%d" % s)
        n = 0
        for b in range(4):
            for db in range(5):
                c = ACC + (b*5+db)*4; ar = (s % NA)*20 + 4*db; br = 96 + (s & 1)*16 + 4*b
                a("v_mfma_f32_16x16x32_bf16 v[%d:%d], a[%d:%d], v[%d:%d], %s" % (c, c+3, ar, ar+3, br, br+3, "0" if s == 0 else "v[%d:%d]" % (c, c+3)))
                if s+1 < 12 and n < 8: t_bread(a, s+1, n >> 1, n & 1)
                n += 1
        if s + NA < 12: t_aload(a, s+NA, ldsc)
        if s + RV < 12: t_vload(a, s+RV)
    a.stamp(4)
    a("s_barrier\ns_nop 7")
    for b in range(1, 4):
        a("s_add_u32 s50, s44, %d\ns_and_b32 s50, s50, 3\ns_mul_i32 s50, s50, %d\ns_add_u32 s50, s50, %d\nv_add_u32 v2, s50, v10" % (b, 15360, (b-1)*5120))
        for db in range(5):
            c = ACC + (b*5+db)*4
            a.lgi("ds_write_b128 v2, v[%d:%d] offset:%d" % (c, c+3, db*1024), "rw")
    a("s_mul_i32 s50, s44, 15360\nv_add_u32 v2, s50, v10")
    a.wall(vm=False); a("s_barrier")
    for db in range(5):
        for b in range(3):
            r = 36 + (db*3+b)*4
            a.lgi("ds_read_b128 v[%d:%d], v2 offset:%d" % (r, r+3, b*5120 + db*1024), "rr%d" % db)
    a("s_lshl_b32 s50, s48, 2\ns_add_u32 s50, s50, s44\ns_mul_i32 s50, s50, 20\ns_lshr_b32 s51, s47, 1\ns_mul_i32 s51, s51, 5\ns_add_u32 s50, s50, s51")
    a("s_lshl_b32 s50, s50, 10\ns_add_u32 s50, s50, %d\ns_and_b32 s51, s47, 1\ns_lshl_b32 s52, s51, 11\ns_add_u32 s52, s52, s50" % TF)
    a("s_lshl_b32 s51, s51, 9\ns_add_u32 s51, s51, s50\ns_add_u32 s51, s51, 4096\nv_lshlrev_b32 v3, 3, v1")
    for db in range(5):
        a.wlg("rr%d" % db)
        c = ACC + db*4; r = 36 + db*12
        for k in range(0, 4, 2):
            a("v_pk_add_f32 v[%d:%d], v[%d:%d], v[%d:%d]" % (c+k, c+k+1, c+k, c+k+1, r+k, r+k+1))
            a("v_pk_add_f32 v[%d:%d], v[%d:%d], v[%d:%d]" % (r+4+k, r+5+k, r+4+k, r+5+k, r+8+k, r+9+k))
        for k in range(0, 4, 2):
            a("v_pk_add_f32 v[%d:%d], v[%d:%d], v[%d:%d]" % (c+k, c+k+1, c+k, c+k+1, r+4+k, r+5+k))
        o = 96 + 2*db
        a("v_cvt_pk_bf16_f32 v%d, v%d, v%d\nv_cvt_pk_bf16_f32 v%d, v%d, v%d" % (o, c, c+1, o+1, c+2, c+3))
        if db in (1, 3): a.vmi("buffer_store_dwordx4 v[%d:%d], v10, s[24:27], s52 offen offset:%d%s" % (o-2, o+1, (db >> 1)*1024, stsc), "tst")
        if db == 4: a.vmi("buffer_store_dwordx2 v[%d:%d], v3, s[24:27], s51 offen%s" % (o, o+1, stsc), "tst")

XS = 36864
def stage_x(a, stsc):
    srd(a, 28, 4, 2048*640*2); srd(a, 32, 12, 640*640*2)
    a("s_sub_u32 s47, s45, 6\ns_lshl_b32 s47, s47, 3\ns_lshr_b32 s50, s46, 2\ns_add_u32 s47, s47, s50\ns_and_b32 s48, s46, 3")
    a("s_movk_i32 s53, 1280\nv_lshrrev_b32 v11, 3, v1\ns_lshl_b32 s50, s44, 5\nv_add_u32 v11, s50, v11\nv_and_b32 v12, 7, v1\nv_lshrrev_b32 v13, 4, v1")
    for p in range(4):
        a("v_add_u32 v14, %d, v13\nv_and_b32 v14, 7, v14\nv_xor_b32 v14, v14, v12\nv_add_u32 v15, %d, v11\nv_mul_u32_u24 v15, s53, v15" % (4*p, 8*p))
        a("v_lshl_add_u32 v%d, v14, 4, v15" % (2+p))
        if p: a("v_subrev_u32 v%d, %d, v%d" % (2+p, 1024*p, 2+p))
    a("s_movk_i32 s54, 3277\ns_lshl_b32 s50, s44, 4")
    UR = [6, 7, 8, 9, 11]
    for p in range(5):
        a("v_add_u32 v12, %d, v1\nv_mul_u32_u24 v13, s54, v12\nv_lshrrev_b32 v13, 16, v13\nv_mul_u32_u24 v14, 20, v13\nv_sub_u32 v12, v12, v14" % (64*p))
        a("v_lshrrev_b32 v14, 2, v13\nv_and_b32 v14, 2, v14\nv_xor_b32 v12, v12, v14\nv_add_u32 v13, s50, v13\nv_mul_u32_u24 v13, s53, v13\nv_lshl_add_u32 v%d, v12, 4, v13" % UR[p])
        if 0 < p < 4: a("v_subrev_u32 v%d, %d, v%d" % (UR[p], 1024*p, UR[p]))
    a("s_mul_i32 s55, s47, %d\ns_mul_i32 s56, s48, 320\ns_lshl_b32 s57, s44, 12\ns_mul_i32 s58, s44, 5120\ns_add_u32 s58, s58, 16384" % (128*1280))
    def dma(st):
        sl = (st % 4)*XS
        a("s_add_u32 m0, s57, %d\ns_add_u32 s50, s55, %d" % (sl, st*128))
        for p in range(4): a.vmi("buffer_load_dwordx4 v%d, s[28:31], s50 offen offset:%d lds" % (2+p, 1024*p), "S%d" % st)
        a("s_add_u32 m0, s58, %d\ns_add_u32 s50, s56, %d" % (sl, st*64*1280))
        for p in range(4): a.vmi("buffer_load_dwordx4 v%d, s[32:35], s50 offen offset:%d lds" % (UR[p], 1024*p), "S%d" % st)
        a("s_add_u32 m0, s58, %d\ns_nop 0" % (sl + 4096))
        a.vmi("buffer_load_dwordx4 v%d, s[32:35], s50 offen lds" % UR[4], "S%d" % st)
    for st in range(4): dma(st)
    a("v_and_b32 v12, 15, v1\nv_lshrrev_b32 v13, 4, v1\nv_lshrrev_b32 v14, 1, v12\nv_xor_b32 v14, v14, v13\ns_lshr_b32 s50, s44, 1\ns_lshl_b32 s50, s50, 13")
    a("v_lshlrev_b32 v12, 7, v12\nv_lshl_add_u32 v12, v14, 4, v12\nv_add_u32 v176, s50, v12\nv_xor_b32 v177, 64, v176")
    a("v_add_u32 v178, %d, v176\nv_add_u32 v179, %d, v177" % (2*XS, 2*XS))
    a("v_lshlrev_b32 v12, 3, v13\nv_bfe_u32 v14, v1, 2, 2\nv_add_u32 v12, v12, v14\ns_movk_i32 s50, 320\nv_mul_u32_u24 v12, s50, v12\nv_and_b32 v14, 3, v1\nv_lshl_add_u32 v12, v14, 3, v12")
    a("s_and_b32 s50, s44, 1\ns_mul_i32 s51, s50, 160\ns_add_u32 s51, s51, 16384\nv_add_u32 v12, s51, v12\nv_and_b32 v13, 1, v13\nv_lshlrev_b32 v13, 5, v13")
    a("s_lshl_b32 s50, s50, 1\ns_sub_u32 s50, 1, s50\nv_mul_lo_u32 v13, v13, s50\nv_add_u32 v180, v12, v13\nv_sub_u32 v181, v12, v13")
    a("v_add_u32 v182, %d, v180\nv_add_u32 v183, %d, v181" % (2*XS, 2*XS))
    ACC = 16; FB = 96
    def reads(u):
        st, k = u >> 1, u & 1; sl = st % 4; hi = (sl >> 1)*2; lo = (sl & 1)*XS; fb = FB + 36*(u & 1)
        R = []
        for i in range(5):
            if i < 4: R.append("ds_read_b128 v[%d:%d], v%d offset:%d" % (fb+4*i, fb+4*i+3, 176+hi+k, lo + i*2048))
            for t in range(2):
                r = fb + 16 + 4*i + 2*t
                R.append("ds_read_b64_tr_b16 v[%d:%d], v%d offset:%d" % (r, r+1, 180+hi+(i & 1), lo + (32*k+4*t)*320 + 32*i))
        return R
    a.wvm("S0"); a("s_barrier")
    a.stamp(1)
    for r in reads(0): a.lgi(r, "F0")
    for u in range(20):
        a.wlg("F%d" % u)
        R = reads(u+1) if u < 19 else []
        fb = FB + 36*(u & 1); n = 0
        for eb in range(5):
            for mb in range(4):
                c = ACC + (eb*4+mb)*4; ar = fb + 16 + 4*eb; br = fb + 4*mb
                a("v_mfma_f32_16x16x32_bf16 v[%d:%d], v[%d:%d], v[%d:%d], %s" % (c, c+3, ar, ar+3, br, br+3, "0" if u == 0 else "v[%d:%d]" % (c, c+3)))
                if n == 1 and (u & 1) and u < 19:
                    st = u >> 1
                    a.wvm("S%d" % (st+1)); a("s_barrier")
                if n >= 1 and R: a.lgi(R.pop(0), "F%d" % (u+1))
                if n == 15 and (u & 1) and (u >> 1) + 4 < 10: dma((u >> 1) + 4)
                n += 1
        assert not R
    a.stamp(4)
    a("s_lshl_b32 s50, s47, 3\ns_lshr_b32 s51, s44, 1\ns_lshl_b32 s51, s51, 2\ns_add_u32 s50, s50, s51\ns_mul_i32 s50, s50, 20\ns_mul_i32 s51, s48, 5\ns_add_u32 s50, s50, s51")
    a("s_lshl_b32 s50, s50, 10\ns_add_u32 s50, s50, %d\ns_and_b32 s51, s44, 1\ns_lshl_b32 s52, s51, 11\ns_add_u32 s52, s52, s50" % XF)
    a("s_lshl_b32 s51, s51, 9\ns_add_u32 s51, s51, s50\ns_add_u32 s51, s51, 4096\nv_lshlrev_b32 v3, 3, v1\ns_nop 3")
    for mb in range(4):
        o = 96 + 12*mb
        for eb in range(5):
            c = ACC + (eb*4+mb)*4
            a("v_cvt_pk_bf16_f32 v%d, v%d, v%d\nv_cvt_pk_bf16_f32 v%d, v%d, v%d" % (o+2*eb, c, c+1, o+2*eb+1, c+2, c+3))
            if eb in (1, 3): a.vmi("buffer_store_dwordx4 v[%d:%d], v10, s[24:27], s52 offen offset:%d%s" % (o+2*eb-2, o+2*eb+1, (eb >> 1)*1024, stsc), "xst")
            if eb == 4: a.vmi("buffer_store_dwordx2 v[%d:%d], v3, s[24:27], s51 offen%s" % (o+8, o+9, stsc), "xst")
        if mb < 3: a("s_add_u32 s52, s52, 20480\ns_add_u32 s51, s51, 20480")

def y_setup(a):
    a("s_lshr_b32 s47, s45, 1\ns_lshl_b32 s47, s47, 2\ns_lshr_b32 s50, s46, 3\ns_add_u32 s47, s47, s50")
    a("s_and_b32 s48, s45, 1\ns_lshl_b32 s48, s48, 3\ns_and_b32 s50, s46, 7\ns_add_u32 s48, s48, s50")
    srd(a, 28, 16, 2048*1536*2)
    a("v_lshlrev_b32 v11, 3, v1\nv_add_u32 v12, 4096, v11\nv_add_u32 v13, 61440, v10\nv_add_u32 v14, 61440, v11")
    a("s_lshl_b32 s55, s47, 3\ns_lshl_b32 s50, s44, 1\ns_add_u32 s55, s55, s50\ns_mul_i32 s55, s55, 20480\ns_add_u32 s55, s55, %d" % XF)
    a("s_mul_i32 s56, s48, 122880\ns_add_u32 s56, s56, %d" % TF)
    for i in range(3):
        a("s_mul_i32 s50, s44, 3\ns_add_u32 s50, s50, %d\ns_and_b32 s51, s50, 1\ns_lshr_b32 s50, s50, 1\ns_mul_i32 s50, s50, 20480\ns_lshl_b32 s51, s51, 10\ns_add_u32 s%d, s50, s51" % (i, 57+i))
def y_xload(a, ks, sc):
    G, r = divmod(ks, 5)
    for mb in range(2):
        d = (ks*2+mb)*4
        a("s_add_u32 s50, s55, %d" % (mb*20480 + G*5120))
        if r < 4: a.vmi("buffer_load_dwordx4 a[%d:%d], v10, s[24:27], s50 offen offset:%d%s" % (d, d+3, r*1024, sc), "X%d" % ks)
        else:
            for h in range(2): a.vmi("buffer_load_dwordx2 a[%d:%d], v12, s[24:27], s50 offen offset:%d%s" % (d+2*h, d+2*h+1, h*512, sc), "X%d" % ks)
def y_tload(a, st, sc):
    for i in range(3):
        a("s_add_u32 m0, s%d, %d\ns_add_u32 s50, s56, m0" % (57+i, st*2048))
        a.vmi("buffer_load_dwordx4 v10, s[24:27], s50 offen%s lds" % sc, "T%d" % st)
def stage_y_main(a, sc, xfirst):
    ACC = 16; FB = 64
    D = a.opt.get("ydepth", 4)
    def issue(st):
        y_tload(a, st, sc)
        if not xfirst:
            y_xload(a, 2*st, sc); y_xload(a, 2*st+1, sc)
    def reads(ks):
        R = []; fb = FB + 24*(ks & 1)
        for nb in range(6):
            off = (nb % 3)*20480 + ks*1024; r = fb + 4*nb
            if ks % 5 < 4: R.append(["ds_read_b128 v[%d:%d], v%d offset:%d" % (r, r+3, 10 if nb < 3 else 13, off)])
            else: R.append(["ds_read_b64 v[%d:%d], v%d offset:%d" % (r+2*h, r+2*h+1, 11 if nb < 3 else 14, off+512*h) for h in range(2)])
        return R
    nis = 10 if xfirst else D
    for st in range(nis): issue(st)
    a.wvm("T0"); a("s_barrier")
    a.stamp(5)
    for rr in reads(0):
        for r in rr: a.lgi(r, "F0")
    for ks in range(20):
        a.wvm("X%d" % ks); a.wlg("F%d" % ks)
        R = reads(ks+1) if ks < 19 else []
        fb = FB + 24*(ks & 1); n = 0
        for nb in range(6):
            for mb in range(2):
                c = ACC + (nb*2+mb)*4; ar = fb + 4*nb; br = (ks*2+mb)*4
                a("v_mfma_f32_16x16x32_bf16 v[%d:%d], v[%d:%d], a[%d:%d], %s" % (c, c+3, ar, ar+3, br, br+3, "0" if ks == 0 else "v[%d:%d]" % (c, c+3)))
                if n == 1 and (ks & 1) and ks < 19:
                    a.wvm("T%d" % ((ks >> 1)+1)); a("s_barrier")
                if n >= 1 and R:
                    for r in R.pop(0): a.lgi(r, "F%d" % (ks+1))
                if n == 8 and (ks & 1) == 0 and nis < 10: issue(nis); nis += 1
                n += 1
    a.stamp(6)
    a("v_and_b32 v2, 15, v1\nv_lshrrev_b32 v3, 4, v1\ns_movk_i32 s50, 3072\nv_mul_u32_u24 v2, s50, v2\nv_lshl_add_u32 v2, v3, 4, v2")
    a("s_lshl_b32 s50, s47, 2\ns_add_u32 s50, s50, s44\ns_mul_i32 s50, s50, %d\ns_mul_i32 s51, s48, 192\ns_add_u32 s50, s50, s51\ns_add_u32 s51, s50, %d\ns_nop 1" % (32*3072, 16*3072))
    for P in range(3):
        for mb in range(2):
            o = FB + (P*2+mb)*4
            for sub in range(2):
                c = ACC + ((2*P+sub)*2+mb)*4
                a("v_cvt_pk_bf16_f32 v%d, v%d, v%d\nv_cvt_pk_bf16_f32 v%d, v%d, v%d" % (o+2*sub, c, c+1, o+2*sub+1, c+2, c+3))
            a.vmi("buffer_store_dwordx4 v[%d:%d], v2, s[28:31], s%d offen offset:%d%s" % (o, o+3, 50+mb, 64*P, a.opt.get("ysc", "")), "yst")

def kd(name, vg, acc):
    return """.section .rodata,"a"
.p2align 6
.amdhsa_kernel %s
  .amdhsa_next_free_vgpr %d
  .amdhsa_next_free_sgpr 96
  .amdhsa_accum_offset %d
  .amdhsa_group_segment_fixed_size 0
  .amdhsa_kernarg_size 72
  .amdhsa_user_sgpr_count 2
  .amdhsa_user_sgpr_kernarg_segment_ptr 1
  .amdhsa_system_sgpr_workgroup_id_x 1
.end_amdhsa_kernel
""" % (name, vg, acc)
def head(name): return ".text\n.globl %s\n.p2align 8\n.type %s,@function\n%s:\n" % (name, name, name)
HDR = open("standalone__weight_only_int_quip__prompt.s.ref").read().split("; Override")[0] if len(sys.argv) > 0 else ""

def gen_multi(opt):
    out = HDR
    out += "; @launch kernel=qd_kernel grid=(256,1,1) block=(256,1,1) lds=151552\n"
    out += "; @launch kernel=qtx_kernel grid=(256,1,1) block=(256,1,1) lds=147456\n"
    out += "; @launch kernel=qy_kernel grid=(256,1,1) block=(256,1,1) lds=122880\n"
    out += '.amdgcn_target "amdgcn-amd-amdhsa--gfx950"\n'
    a = Asm(opt); prologue(a, 256, "L_d_end"); a("s_cmp_ge_u32 s45, 6\ns_cbranch_scc1 L_d_end")
    t_coords(a); stage_d_loads(a); stage_d_compute(a, ""); a.wall(); write_stamps(a, 0); a("L_d_end:\ns_endpgm")
    out += head("qd_kernel") + a.text()
    a = Asm(opt); a.uid = 100; prologue(a, 256, "L_tx_end"); a("s_cmp_ge_u32 s45, 6\ns_cbranch_scc1 L_x")
    t_coords(a); t_setup(a)
    stage_t_main(a, "", "", 0); a("s_branch L_tx_fin\nL_x:"); a.vm = []; a.lg = []
    stage_x(a, ""); a("L_tx_fin:"); a.wall(); write_stamps(a, 1); a("L_tx_end:\ns_endpgm")
    out += head("qtx_kernel") + a.text()
    a = Asm(opt); a.uid = 200; prologue(a, 256, "L_y_end"); y_setup(a); stage_y_main(a, "", False); a.wall(); write_stamps(a, 2); a("L_y_end:\ns_endpgm")
    out += head("qy_kernel") + a.text()
    out += kd("qd_kernel", 160, 160) + kd("qtx_kernel", 192+80, 192) + kd("qy_kernel", 128+160, 128)
    return out

if __name__ == "__main__":
    opt = {}
    mode = sys.argv[1]; outp = sys.argv[2]
    for kv in sys.argv[3:]:
        k, v = kv.split("="); opt[k] = int(v) if v.lstrip("-").isdigit() else v
    open(outp, "w").write(globals()["gen_" + mode](opt))
```

```python
import sys
KN = "standalone__weight_only_int_quip__prompt_kernel"
WQ, TF, XF, FL, ST = 0x0, 0x200000, 0x400000, 0x700000, 0x780000
WS_BYTES = 0x800000

class Asm:
    def __init__(s, opt):
        s.L = []; s.vm = []; s.lg = []; s.opt = opt; s.nst = 0; s.uid = 0
    def __call__(s, t):
        for x in t.split("\n"):
            x = x.strip()
            if x: s.L.append(x if x.endswith(":") else "    " + x)
    def vmi(s, t, tag): s(t); s.vm.append(tag)
    def lgi(s, t, tag): s(t); s.lg.append(tag)
    def _n(s, q, tags):
        idx = [i for i, t in enumerate(q) if t in tags]
        if not idx: return None
        n = len(q) - 1 - max(idx)
        del q[:max(idx) + 1]
        return n
    def wvm(s, *tags):
        n = s._n(s.vm, tags)
        if n is not None: s("s_waitcnt vmcnt(%d)" % min(n, 63))
    def wlg(s, *tags):
        n = s._n(s.lg, tags)
        if n is not None: s("s_waitcnt lgkmcnt(%d)" % min(n, 15))
    def wall(s, vm=True, lg=True):
        s("s_waitcnt" + (" vmcnt(0)" if vm else "") + (" lgkmcnt(0)" if lg else ""))
        if vm: s.vm = []
        if lg: s.lg = []
    def stamp(s, i):
        if s.opt.get("stamps"):
            s("s_memrealtime s[%d:%d]\ns_memtime s[82:83]" % (64 + 2*i, 65 + 2*i)); s.wall(vm=False); s("s_mov_b32 s%d, s82" % (65 + 2*i))
    def label(s, b): s.uid += 1; return "L_%s_%d" % (b, s.uid)
    def text(s): return "\n".join(s.L) + "\n"

def srd(a, d, lo, nbytes):
    a("s_mov_b32 s%d, s%d\ns_and_b32 s%d, s%d, 0xffff\ns_mov_b32 s%d, 0x%x\ns_mov_b32 s%d, 0x20000" % (d, lo, d+1, lo+1, d+2, nbytes, d+3))

def prologue(a, nwg, end):
    a("s_cmp_ge_u32 s2, %d\ns_cbranch_scc1 %s" % (nwg, end))
    if a.opt.get("stamps"):
        for i in range(8): a("s_mov_b64 s[%d:%d], 0" % (64+2*i, 65+2*i))
    a.stamp(0)
    a("s_load_dwordx16 s[4:19], s[0:1], 0\ns_load_dwordx2 s[20:21], s[0:1], 64")
    a("v_lshrrev_b32 v2, 6, v0\nv_and_b32 v1, 63, v0\ns_and_b32 s45, s2, 7\nv_readfirstlane_b32 s44, v2\ns_lshr_b32 s46, s2, 3")
    a("v_lshlrev_b32 v10, 4, v1")
    a("s_waitcnt lgkmcnt(0)")
    srd(a, 24, 20, WS_BYTES)

def write_stamps(a, kidx):
    if not a.opt.get("stamps"): return
    a.stamp(7)
    l = a.label("nost")
    a("s_cmp_lg_u32 s44, 0\ns_cbranch_scc1 %s" % l)
    a("s_lshl_b32 s50, s2, 6\ns_add_u32 s50, s50, 0x%x" % (ST + kidx*0x4000))
    a("v_mov_b32 v2, 0")
    for i in range(4):
        for k in range(4): a("v_mov_b32 v%d, s%d" % (4+k, 64+4*i+k))
        a("buffer_store_dwordx4 v[4:7], v2, s[24:27], s50 offen offset:%d\ns_nop 1" % (16*i))
    a("s_waitcnt vmcnt(0)\n%s:" % l)

def t_coords(a):
    a("s_cmp_ge_u32 s45, 3\ns_cselect_b32 s50, 1, 0\ns_mul_i32 s51, s50, 3\ns_sub_u32 s51, s45, s51")
    a("s_lshl_b32 s47, s50, 2\ns_lshr_b32 s52, s46, 3\ns_add_u32 s47, s47, s52")
    a("s_lshl_b32 s48, s51, 3\ns_and_b32 s52, s46, 7\ns_add_u32 s48, s48, s52")

DL = 131072
def stage_d_loads(a):
    srd(a, 28, 6, 640*1536*4); srd(a, 36, 8, 5*1536*2); srd(a, 40, 10, 5*1536*2)
    a("v_lshrrev_b32 v2, 4, v1\ns_mul_i32 s50, s44, 20\nv_add_u32 v2, s50, v2\nv_and_b32 v3, 15, v1")
    a("s_mul_i32 s51, s47, %d\ns_lshl_b32 s52, s48, 8\ns_add_u32 s51, s51, s52" % (80*6144))
    a("s_mul_i32 s52, s44, 5120\ns_add_u32 s52, s52, %d\ns_movk_i32 s53, 6144" % DL)
    for p in range(5):
        a("v_add_u32 v4, %d, v2\nv_and_b32 v5, 15, v4\nv_xor_b32 v5, v5, v3\nv_mul_u32_u24 v4, s53, v4\nv_lshl_add_u32 v4, v5, 4, v4" % (4*p))
        a("s_add_u32 m0, s52, %d\ns_nop 0" % (1024*p))
        a.vmi("buffer_load_dwordx4 v4, s[28:31], s51 offen lds", "qw")
    a("v_lshrrev_b32 v2, 4, v1\nv_lshlrev_b32 v2, 4, v2")
    a("s_and_b32 s52, s44, 1\ns_lshl_b32 s52, s52, 6\ns_lshl_b32 s53, s48, 7\ns_add_u32 s52, s52, s53")
    for u in range(3):
        a("s_lshr_b32 s53, s44, 1\ns_add_u32 s53, s53, %d\ns_min_u32 s53, s53, 4\ns_mul_i32 s54, s47, 5\ns_add_u32 s53, s53, s54\ns_lshr_b32 s53, s53, 3" % (2*u))
        a("s_mul_i32 s53, s53, 3072\ns_add_u32 s53, s53, s52")
        a.vmi("buffer_load_dwordx4 v[%d:%d], v2, s[36:39], s53 offen" % (128+8*u, 131+8*u), "sz")
        a.vmi("buffer_load_dwordx4 v[%d:%d], v2, s[40:43], s53 offen" % (132+8*u, 135+8*u), "sz")

def stage_d_compute(a, sc):
    a.wvm("qw", "sz"); a("s_barrier")
    a("v_and_b32 v2, 15, v1\nv_lshrrev_b32 v3, 4, v1\nv_lshlrev_b32 v3, 1, v3\ns_and_b32 s50, s44, 1\ns_lshl_b32 s50, s50, 3\nv_add_u32 v3, s50, v3")
    a("v_xor_b32 v4, v3, v2\nv_xor_b32 v5, 1, v4\ns_lshr_b32 s50, s44, 1\ns_lshl_b32 s50, s50, 12\ns_add_u32 s50, s50, %d" % DL)
    a("v_lshlrev_b32 v2, 8, v2\nv_add_u32 v2, s50, v2\nv_lshl_add_u32 v4, v4, 4, v2\nv_lshl_add_u32 v5, v5, 4, v2")
    a("s_mul_i32 s50, s47, 5\ns_lshr_b32 s51, s44, 1\ns_add_u32 s50, s50, s51\ns_mul_i32 s50, s50, 48\ns_lshl_b32 s51, s48, 1\ns_add_u32 s50, s50, s51")
    a("s_and_b32 s51, s44, 1\ns_add_u32 s50, s50, s51\ns_lshl_b32 s50, s50, 10\ns_add_u32 s50, s50, %d" % WQ)
    skip = a.label("dskip")
    for u in range(3):
        if u == 2: a("s_cmp_ge_u32 s44, 2\ns_cbranch_scc1 %s" % skip)
        q = 16 + 8*u
        a.lgi("ds_read_b128 v[%d:%d], v4 offset:%d" % (q, q+3, 8192*u), "dq%d" % u)
        a.lgi("ds_read_b128 v[%d:%d], v5 offset:%d" % (q+4, q+7, 8192*u), "dq%d" % u)
        s0, z0, t = 128+8*u, 132+8*u, 48
        for k in range(4):
            a("v_lshlrev_b32 v%d, 16, v%d\nv_and_b32 v%d, 0xffff0000, v%d" % (t+2*k, s0+k, t+2*k+1, s0+k))
            a("v_lshlrev_b32 v%d, 16, v%d\nv_and_b32 v%d, 0xffff0000, v%d" % (t+8+2*k, z0+k, t+8+2*k+1, z0+k))
        a.wlg("dq%d" % u)
        for k in range(8): a("v_cvt_f32_i32 v%d, v%d" % (q+k, q+k))
        for k in range(8): a("v_sub_f32 v%d, v%d, v%d" % (q+k, q+k, t+8+k))
        for k in range(8): a("v_mul_f32 v%d, v%d, v%d" % (q+k, q+k, t+k))
        o = 64 + 4*u
        for k in range(4): a("v_cvt_pk_bf16_f32 v%d, v%d, v%d" % (o+k, q+2*k, q+2*k+1))
        a("s_add_u32 s51, s50, %d" % (u*2*48*1024))
        a("buffer_store_dwordx4 v[%d:%d], v10, s[24:27], s51 offen%s" % (o, o+3, sc))
        if u < 2: a.vm.append("dst")
    a("%s:" % skip)

RV, NA = 8, 4
def t_setup(a):
    srd(a, 32, 14, 1536*1536*2)
    a("v_lshrrev_b32 v6, 3, v1\nv_and_b32 v7, 7, v1\nv_lshrrev_b32 v8, 2, v1\nv_and_b32 v8, 4, v8\nv_xor_b32 v7, v7, v8")
    a("s_movk_i32 s50, 3072\nv_mul_u32_u24 v6, s50, v6\nv_lshl_add_u32 v2, v7, 4, v6")
    for p in range(1, 4): a("v_add_u32 v%d, %d, v2" % (2+p, p*(24576-1024)))
    a("v_lshrrev_b32 v11, 4, v1\nv_lshlrev_b32 v11, 3, v11\nv_bfe_u32 v12, v1, 2, 2\nv_add_u32 v11, v11, v12\nv_lshlrev_b32 v11, 7, v11")
    a("v_and_b32 v12, 3, v1\nv_lshrrev_b32 v13, 1, v1\nv_and_b32 v13, 4, v13\nv_xor_b32 v12, v12, v13\nv_lshl_add_u32 v11, v12, 4, v11")
    a("s_mul_i32 s53, s44, %d" % (RV*4096))
    for b in range(4):
        a("s_add_u32 s50, s44, %d\ns_and_b32 s51, s50, 1\ns_lshl_b32 s51, s51, 3\ns_add_u32 s51, s51, s53\ns_and_b32 s50, s50, 2\ns_lshl_b32 s50, s50, 5" % b)
        a("v_xor_b32 v%d, s50, v11\nv_add_u32 v%d, s51, v%d" % (6+b, 6+b, 6+b))
    a("s_mul_i32 s55, s44, %d\ns_lshl_b32 s50, s48, 7\ns_add_u32 s55, s55, s50" % (12*32*3072))
    a("s_mul_i32 s56, s47, %d\ns_mul_i32 s50, s44, %d\ns_add_u32 s56, s56, s50\ns_add_u32 s56, s56, %d" % (5*48*1024, 12*1024, WQ))
    a("s_mov_b32 s57, s53")
def t_vload1(a, s, p):
    a("s_add_u32 m0, s57, %d\ns_add_u32 s50, s55, %d" % ((s % RV)*4096, s*32*3072))
    a.vmi("buffer_load_dwordx4 v%d, s[32:35], s50 offen offset:%d lds" % (2+p, 1024*p), "V%d" % s)
def t_vload(a, s):
    a("s_add_u32 m0, s57, %d\ns_add_u32 s50, s55, %d" % ((s % RV)*4096, s*32*3072))
    for p in range(4):
        a.vmi("buffer_load_dwordx4 v%d, s[32:35], s50 offen offset:%d lds" % (2+p, 1024*p), "V%d" % s)
def t_aload1(a, s, b, sc):
    NA = a.opt.get("na", 4)
    r = (s % NA)*20 + 4*b
    a("s_add_u32 s50, s56, %d" % (b*48*1024 + s*1024))
    a.vmi("buffer_load_dwordx4 a[%d:%d], v10, s[24:27], s50 offen%s" % (r, r+3, sc), "A%d" % s)
def t_bread(a, s, b, t):
    r = 96 + (s & 1)*16 + 4*b + 2*t
    a.lgi("ds_read_b64_tr_b16 v[%d:%d], v%d offset:%d" % (r, r+1, 6+b, (s % RV)*4096 + t*512), "B%d" % s)
def stage_t_main(a, ldsc, stsc, vdone, pre_store=None):
    ACC = 16
    NA = a.opt.get("na", 4)
    for s in range(RV):
        if s >= vdone: t_vload(a, s)
        if s < NA:
            for b in range(5): t_aload1(a, s, b, ldsc)
    a.wvm("V0")
    for b in range(4):
        for t in range(2): t_bread(a, 0, b, t)
    vq = [(s, p) for s in range(RV, 12) for p in range(4)]
    for s in range(12):
        a.wvm("A%d" % s, "V%d" % (s+1)); a.wlg("B%d" % s)
        if s == 0: a.stamp(3)
        n = 0
        for db in range(5):
            for b in range(4):
                c = ACC + (b*5+db)*4; ar = (s % NA)*20 + 4*db; br = 96 + (s & 1)*16 + 4*b
                a("v_mfma_f32_16x16x32_bf16 v[%d:%d], a[%d:%d], v[%d:%d], %s" % (c, c+3, ar, ar+3, br, br+3, "0" if s == 0 else "v[%d:%d]" % (c, c+3)))
                if s+1 < 12 and n < 16 and (n & 1) == 0: t_bread(a, s+1, n >> 2, (n >> 1) & 1)
                if b == 3 and s + NA < 12: t_aload1(a, s+NA, db, ldsc)
                if b == 1 and db in (1, 3) and vq and vq[0][0] - RV <= s: t_vload1(a, *vq.pop(0))
                n += 1
    assert not vq
    a.stamp(4)
    a("s_barrier\ns_nop 7")
    for b in range(1, 4):
        a("s_add_u32 s50, s44, %d\ns_and_b32 s50, s50, 3\ns_mul_i32 s50, s50, %d\ns_add_u32 s50, s50, %d\nv_add_u32 v2, s50, v10" % (b, 15360, (b-1)*5120))
        for db in range(5):
            c = ACC + (b*5+db)*4
            a.lgi("ds_write_b128 v2, v[%d:%d] offset:%d" % (c, c+3, db*1024), "rw")
    a("s_mul_i32 s50, s44, 15360\nv_add_u32 v2, s50, v10")
    a.wall(vm=False); a("s_barrier")
    for db in range(5):
        for b in range(3):
            r = 36 + (db*3+b)*4
            a.lgi("ds_read_b128 v[%d:%d], v2 offset:%d" % (r, r+3, b*5120 + db*1024), "rr%d" % db)
    if pre_store: pre_store()
    a("s_lshl_b32 s50, s48, 2\ns_add_u32 s50, s50, s44\ns_mul_i32 s50, s50, 20\ns_lshr_b32 s51, s47, 1\ns_mul_i32 s51, s51, 5\ns_add_u32 s50, s50, s51")
    a("s_lshl_b32 s50, s50, 10\ns_add_u32 s50, s50, %d\ns_and_b32 s51, s47, 1\ns_lshl_b32 s52, s51, 11\ns_add_u32 s52, s52, s50" % TF)
    a("s_lshl_b32 s51, s51, 9\ns_add_u32 s51, s51, s50\ns_add_u32 s51, s51, 4096\nv_lshlrev_b32 v3, 3, v1")
    for db in range(5):
        a.wlg("rr%d" % db)
        c = ACC + db*4; r = 36 + db*12
        for k in range(0, 4, 2):
            a("v_pk_add_f32 v[%d:%d], v[%d:%d], v[%d:%d]" % (c+k, c+k+1, c+k, c+k+1, r+k, r+k+1))
            a("v_pk_add_f32 v[%d:%d], v[%d:%d], v[%d:%d]" % (r+4+k, r+5+k, r+4+k, r+5+k, r+8+k, r+9+k))
        for k in range(0, 4, 2):
            a("v_pk_add_f32 v[%d:%d], v[%d:%d], v[%d:%d]" % (c+k, c+k+1, c+k, c+k+1, r+4+k, r+5+k))
        o = 96 + 2*db
        a("v_cvt_pk_bf16_f32 v%d, v%d, v%d\nv_cvt_pk_bf16_f32 v%d, v%d, v%d" % (o, c, c+1, o+1, c+2, c+3))
        if db in (1, 3): a.vmi("buffer_store_dwordx4 v[%d:%d], v10, s[24:27], s52 offen offset:%d%s" % (o-2, o+1, (db >> 1)*1024, stsc), "tst")
        if db == 4: a.vmi("buffer_store_dwordx2 v[%d:%d], v3, s[24:27], s51 offen%s" % (o, o+1, stsc), "tst")

XS = 36864
def stage_x(a, stsc, pre_store=None):
    srd(a, 28, 4, 2048*640*2); srd(a, 32, 12, 640*640*2)
    a("s_sub_u32 s47, s45, 6\ns_lshl_b32 s47, s47, 3\ns_lshr_b32 s50, s46, 2\ns_add_u32 s47, s47, s50\ns_and_b32 s48, s46, 3")
    a("s_movk_i32 s53, 1280\nv_lshrrev_b32 v11, 3, v1\ns_lshl_b32 s50, s44, 5\nv_add_u32 v11, s50, v11\nv_and_b32 v12, 7, v1\nv_lshrrev_b32 v13, 4, v1")
    for p in range(4):
        a("v_add_u32 v14, %d, v13\nv_and_b32 v14, 7, v14\nv_xor_b32 v14, v14, v12\nv_add_u32 v15, %d, v11\nv_mul_u32_u24 v15, s53, v15" % (4*p, 8*p))
        a("v_lshl_add_u32 v%d, v14, 4, v15" % (2+p))
        if p: a("v_subrev_u32 v%d, %d, v%d" % (2+p, 1024*p, 2+p))
    a("s_movk_i32 s54, 3277\ns_lshl_b32 s50, s44, 4")
    UR = [6, 7, 8, 9, 11]
    for p in range(5):
        a("v_add_u32 v12, %d, v1\nv_mul_u32_u24 v13, s54, v12\nv_lshrrev_b32 v13, 16, v13\nv_mul_u32_u24 v14, 20, v13\nv_sub_u32 v12, v12, v14" % (64*p))
        a("v_lshrrev_b32 v14, 2, v13\nv_and_b32 v14, 2, v14\nv_xor_b32 v12, v12, v14\nv_add_u32 v13, s50, v13\nv_mul_u32_u24 v13, s53, v13\nv_lshl_add_u32 v%d, v12, 4, v13" % UR[p])
        if 0 < p < 4: a("v_subrev_u32 v%d, %d, v%d" % (UR[p], 1024*p, UR[p]))
    a("s_mul_i32 s55, s47, %d\ns_mul_i32 s56, s48, 320\ns_lshl_b32 s57, s44, 12\ns_mul_i32 s58, s44, 5120\ns_add_u32 s58, s58, 16384" % (128*1280))
    def dma1(st, i):
        sl = (st % 4)*XS
        if i < 4:
            a("s_add_u32 m0, s57, %d\ns_add_u32 s50, s55, %d" % (sl, st*128))
            a.vmi("buffer_load_dwordx4 v%d, s[28:31], s50 offen offset:%d lds" % (2+i, 1024*i), "S%d" % st)
        else:
            p = i - 4
            a("s_add_u32 m0, s58, %d\ns_add_u32 s50, s56, %d" % (sl + (4096 if p == 4 else 0), st*64*1280))
            a.vmi("buffer_load_dwordx4 v%d, s[32:35], s50 offen offset:%d lds" % (UR[p], 1024*(p & 3) if p < 4 else 0), "S%d" % st)
    def dma(st):
        for i in range(9): dma1(st, i)
    XP = a.opt.get('xpre', 2)
    for st in range(XP): dma(st)
    dq = [(st, i) for st in range(XP, 10) for i in range(9)]
    free = 4
    a("v_and_b32 v12, 15, v1\nv_lshrrev_b32 v13, 4, v1\nv_lshrrev_b32 v14, 1, v12\nv_xor_b32 v14, v14, v13\ns_lshr_b32 s50, s44, 1\ns_lshl_b32 s50, s50, 13")
    a("v_lshlrev_b32 v12, 7, v12\nv_lshl_add_u32 v12, v14, 4, v12\nv_add_u32 v176, s50, v12\nv_xor_b32 v177, 64, v176")
    a("v_add_u32 v178, %d, v176\nv_add_u32 v179, %d, v177" % (2*XS, 2*XS))
    a("v_lshlrev_b32 v12, 3, v13\nv_bfe_u32 v14, v1, 2, 2\nv_add_u32 v12, v12, v14\ns_movk_i32 s50, 320\nv_mul_u32_u24 v12, s50, v12\nv_and_b32 v14, 3, v1\nv_lshl_add_u32 v12, v14, 3, v12")
    a("s_and_b32 s50, s44, 1\ns_mul_i32 s51, s50, 160\ns_add_u32 s51, s51, 16384\nv_add_u32 v12, s51, v12\nv_and_b32 v13, 1, v13\nv_lshlrev_b32 v13, 5, v13")
    a("s_lshl_b32 s50, s50, 1\ns_sub_u32 s50, 1, s50\nv_mul_lo_u32 v13, v13, s50\nv_add_u32 v180, v12, v13\nv_sub_u32 v181, v12, v13")
    a("v_add_u32 v182, %d, v180\nv_add_u32 v183, %d, v181" % (2*XS, 2*XS))
    ACC = 16; FB = 96
    def reads(u):
        st, k = u >> 1, u & 1; sl = st % 4; hi = (sl >> 1)*2; lo = (sl & 1)*XS; fb = FB + 36*(u & 1)
        R = []
        for i in range(5):
            if i < 4: R.append("ds_read_b128 v[%d:%d], v%d offset:%d" % (fb+4*i, fb+4*i+3, 176+hi+k, lo + i*2048))
            for t in range(2):
                r = fb + 16 + 4*i + 2*t
                R.append("ds_read_b64_tr_b16 v[%d:%d], v%d offset:%d" % (r, r+1, 180+hi+(i & 1), lo + (32*k+4*t)*320 + 32*i))
        return R
    a.wvm("S0"); a("s_barrier")
    a.stamp(1)
    for r in reads(0): a.lgi(r, "F0")
    for u in range(20):
        a.wlg("F%d" % u)
        R = reads(u+1) if u < 19 else []
        fb = FB + 36*(u & 1); n = 0
        for eb in range(5):
            for mb in range(4):
                c = ACC + (eb*4+mb)*4; ar = fb + 16 + 4*eb; br = fb + 4*mb
                a("v_mfma_f32_16x16x32_bf16 v[%d:%d], v[%d:%d], v[%d:%d], %s" % (c, c+3, ar, ar+3, br, br+3, "0" if u == 0 else "v[%d:%d]" % (c, c+3)))
                if n == 1 and (u & 1) and u < 19:
                    st = u >> 1
                    a.wvm("S%d" % (st+1)); a("s_barrier"); free = st + 5
                if n >= 1 and R: a.lgi(R.pop(0), "F%d" % (u+1))
                if n % a.opt.get('xev', 4) == a.opt.get('xev', 4) - 1 and dq and dq[0][0] < free: dma1(*dq.pop(0))
                n += 1
        assert not R
    a.stamp(4)
    assert not dq
    if pre_store: pre_store()
    a("s_lshl_b32 s50, s47, 3\ns_lshr_b32 s51, s44, 1\ns_lshl_b32 s51, s51, 2\ns_add_u32 s50, s50, s51\ns_mul_i32 s50, s50, 20\ns_mul_i32 s51, s48, 5\ns_add_u32 s50, s50, s51")
    a("s_lshl_b32 s50, s50, 10\ns_add_u32 s50, s50, %d\ns_and_b32 s51, s44, 1\ns_lshl_b32 s52, s51, 11\ns_add_u32 s52, s52, s50" % XF)
    a("s_lshl_b32 s51, s51, 9\ns_add_u32 s51, s51, s50\ns_add_u32 s51, s51, 4096\nv_lshlrev_b32 v3, 3, v1\ns_nop 3")
    for mb in range(4):
        o = 96 + 12*mb
        for eb in range(5):
            c = ACC + (eb*4+mb)*4
            a("v_cvt_pk_bf16_f32 v%d, v%d, v%d\nv_cvt_pk_bf16_f32 v%d, v%d, v%d" % (o+2*eb, c, c+1, o+2*eb+1, c+2, c+3))
            if eb in (1, 3): a.vmi("buffer_store_dwordx4 v[%d:%d], v10, s[24:27], s52 offen offset:%d%s" % (o+2*eb-2, o+2*eb+1, (eb >> 1)*1024, stsc), "xst")
            if eb == 4: a.vmi("buffer_store_dwordx2 v[%d:%d], v3, s[24:27], s51 offen%s" % (o+8, o+9, stsc), "xst")
        if mb < 3: a("s_add_u32 s52, s52, 20480\ns_add_u32 s51, s51, 20480")

def y_coords(a):
    a("s_lshr_b32 s81, s45, 1\ns_lshl_b32 s81, s81, 2\ns_lshr_b32 s50, s46, 3\ns_add_u32 s81, s81, s50")
    a("s_and_b32 s49, s45, 1\ns_lshl_b32 s49, s49, 3\ns_and_b32 s50, s46, 7\ns_add_u32 s49, s49, s50")
def y_setup(a):
    a("s_mov_b32 s47, s81\ns_mov_b32 s48, s49")
    srd(a, 28, 16, 2048*1536*2)
    a("v_lshlrev_b32 v11, 3, v1\nv_add_u32 v12, 4096, v11\nv_add_u32 v13, 61440, v10\nv_add_u32 v14, 61440, v11")
    a("s_lshl_b32 s55, s47, 3\ns_lshl_b32 s50, s44, 1\ns_add_u32 s55, s55, s50\ns_mul_i32 s55, s55, 20480\ns_add_u32 s55, s55, %d" % XF)
    a("s_mul_i32 s56, s48, 122880\ns_add_u32 s56, s56, %d" % TF)
    for i in range(3):
        a("s_mul_i32 s50, s44, 3\ns_add_u32 s50, s50, %d\ns_and_b32 s51, s50, 1\ns_lshr_b32 s50, s50, 1\ns_mul_i32 s50, s50, 20480\ns_lshl_b32 s51, s51, 10\ns_add_u32 s%d, s50, s51" % (i, 57+i))
def y_xload(a, ks, sc):
    G, r = divmod(ks, 5)
    for mb in range(2):
        d = (ks*2+mb)*4
        a("s_add_u32 s50, s55, %d" % (mb*20480 + G*5120))
        if r < 4: a.vmi("buffer_load_dwordx4 a[%d:%d], v10, s[24:27], s50 offen offset:%d%s" % (d, d+3, r*1024, sc), "X%d" % ks)
        else:
            for h in range(2): a.vmi("buffer_load_dwordx2 a[%d:%d], v12, s[24:27], s50 offen offset:%d%s" % (d+2*h, d+2*h+1, h*512, sc), "X%d" % ks)
def y_tload1(a, st, i, sc):
    a("s_add_u32 m0, s%d, %d\ns_add_u32 s50, s56, m0" % (57+i, st*2048))
    a.vmi("buffer_load_dwordx4 v10, s[24:27], s50 offen%s lds" % sc, "T%d" % st)
def stage_y_main(a, sc, xfirst):
    ACC = 16; FB = 64
    q = []
    for st in range(10):
        q += [lambda st=st, i=i: y_tload1(a, st, i, sc) for i in range(3)]
        if not xfirst: q += [lambda k=2*st: y_xload(a, k, sc), lambda k=2*st+1: y_xload(a, k, sc)]
    for i in range(a.opt.get("ypre", 2)*(3 if xfirst else 5)): q.pop(0)()
    ev = a.opt.get("yev", 4)
    def reads(ks):
        R = []; fb = FB + 24*(ks & 1)
        for nb in range(6):
            off = (nb % 3)*20480 + ks*1024; r = fb + 4*nb
            if ks % 5 < 4: R.append(["ds_read_b128 v[%d:%d], v%d offset:%d" % (r, r+3, 10 if nb < 3 else 13, off)])
            else: R.append(["ds_read_b64 v[%d:%d], v%d offset:%d" % (r+2*h, r+2*h+1, 11 if nb < 3 else 14, off+512*h) for h in range(2)])
        return R
    a.wvm("T0"); a("s_barrier")
    a.stamp(5)
    for rr in reads(0):
        for r in rr: a.lgi(r, "F0")
    for ks in range(20):
        a.wvm("X%d" % ks); a.wlg("F%d" % ks)
        R = reads(ks+1) if ks < 19 else []
        fb = FB + 24*(ks & 1); n = 0
        for nb in range(6):
            for mb in range(2):
                c = ACC + (nb*2+mb)*4; ar = fb + 4*nb; br = (ks*2+mb)*4
                a("v_mfma_f32_16x16x32_bf16 v[%d:%d], v[%d:%d], a[%d:%d], %s" % (c, c+3, ar, ar+3, br, br+3, "0" if ks == 0 else "v[%d:%d]" % (c, c+3)))
                if n == 1 and (ks & 1) and ks < 19:
                    a.wvm("T%d" % ((ks >> 1)+1)); a("s_barrier")
                if n >= 1 and R:
                    for r in R.pop(0): a.lgi(r, "F%d" % (ks+1))
                if n % ev == ev - 1 and q: q.pop(0)()
                n += 1
    assert not q
    a.stamp(6)
    a("v_and_b32 v2, 15, v1\nv_lshrrev_b32 v3, 4, v1\ns_movk_i32 s50, 3072\nv_mul_u32_u24 v2, s50, v2\nv_lshl_add_u32 v2, v3, 4, v2")
    a("s_lshl_b32 s50, s47, 2\ns_add_u32 s50, s50, s44\ns_mul_i32 s50, s50, %d\ns_mul_i32 s51, s48, 192\ns_add_u32 s50, s50, s51\ns_add_u32 s51, s50, %d\ns_nop 1" % (32*3072, 16*3072))
    for P in range(3):
        for mb in range(2):
            o = FB + (P*2+mb)*4
            for sub in range(2):
                c = ACC + ((2*P+sub)*2+mb)*4
                a("v_cvt_pk_bf16_f32 v%d, v%d, v%d\nv_cvt_pk_bf16_f32 v%d, v%d, v%d" % (o+2*sub, c, c+1, o+2*sub+1, c+2, c+3))
            a.vmi("buffer_store_dwordx4 v[%d:%d], v2, s[28:31], s%d offen offset:%d%s" % (o, o+3, 50+mb, 64*P, a.opt.get("ysc", "")), "yst")

def kd(name, vg, acc):
    return """.section .rodata,"a"
.p2align 6
.amdhsa_kernel %s
  .amdhsa_next_free_vgpr %d
  .amdhsa_next_free_sgpr 96
  .amdhsa_accum_offset %d
  .amdhsa_group_segment_fixed_size 0
  .amdhsa_kernarg_size 72
  .amdhsa_user_sgpr_count 2
  .amdhsa_user_sgpr_kernarg_segment_ptr 1
  .amdhsa_system_sgpr_workgroup_id_x 1
.end_amdhsa_kernel
""" % (name, vg, acc)
def head(name): return ".text\n.globl %s\n.p2align 8\n.type %s,@function\n%s:\n" % (name, name, name)
HDR = open("standalone__weight_only_int_quip__prompt.s.ref").read().split("; Override")[0] if len(sys.argv) > 0 else ""

def gen_multi(opt):
    out = HDR
    out += "; @launch kernel=qd_kernel grid=(256,1,1) block=(256,1,1) lds=151552\n"
    out += "; @launch kernel=qtx_kernel grid=(256,1,1) block=(256,1,1) lds=147456\n"
    out += "; @launch kernel=qy_kernel grid=(256,1,1) block=(256,1,1) lds=122880\n"
    out += '.amdgcn_target "amdgcn-amd-amdhsa--gfx950"\n'
    a = Asm(opt); prologue(a, 256, "L_d_end"); a("s_cmp_ge_u32 s45, 6\ns_cbranch_scc1 L_d_end")
    t_coords(a); stage_d_loads(a); stage_d_compute(a, ""); a.wall(); write_stamps(a, 0); a("L_d_end:\ns_endpgm")
    out += head("qd_kernel") + a.text()
    a = Asm(opt); a.uid = 100; prologue(a, 256, "L_tx_end"); a("s_cmp_ge_u32 s45, 6\ns_cbranch_scc1 L_x")
    t_coords(a); t_setup(a)
    stage_t_main(a, "", "", 0); a("s_branch L_tx_fin\nL_x:"); a.vm = []; a.lg = []
    stage_x(a, ""); a("L_tx_fin:"); a.wall(); write_stamps(a, 1); a("L_tx_end:\ns_endpgm")
    out += head("qtx_kernel") + a.text()
    a = Asm(opt); a.uid = 200; prologue(a, 256, "L_y_end"); y_coords(a); y_setup(a); stage_y_main(a, "", False); a.wall(); write_stamps(a, 2); a("L_y_end:\ns_endpgm")
    out += head("qy_kernel") + a.text()
    out += kd("qd_kernel", 160, 160) + kd("qtx_kernel", 192+80, 192) + kd("qy_kernel", 128+160, 128)
    return out

FD, FT, FX = FL + 0x1000, FL + 0x2000, FL + 0x3000
SPIN = 20000
def poll_issue(a, r, n, soff):
    a("v_min_u32 v%d, %d, v1\nv_lshlrev_b32 v%d, 3, v%d" % (r+2, n-1, r+2, r+2))
    a.vmi("buffer_load_dwordx2 v[%d:%d], v%d, s[24:27], %s offen sc1" % (r, r+1, r+2, soff), "poll%d" % r)
def poll_check(a, r, soff):
    a.wvm("poll%d" % r)
    lp, ok = a.label("spin"), a.label("ok")
    a("s_movk_i32 s63, %d\n%s:" % (SPIN, lp))
    a("v_cmp_ne_u32 vcc, s80, v%d\nv_cmp_ne_u32 s[84:85], s62, v%d\ns_or_b64 vcc, vcc, s[84:85]\ns_cbranch_vccz %s" % (r, r+1, ok))
    a("s_sub_u32 s63, s63, 1\ns_cmp_eq_u32 s63, 0\ns_cbranch_scc1 %s" % ok)
    if a.opt.get("sleep"): a("s_sleep %d" % a.opt["sleep"])
    a("buffer_load_dwordx2 v[%d:%d], v%d, s[24:27], %s offen sc1\ns_waitcnt vmcnt(0)\ns_branch %s\n%s:" % (r, r+1, r+2, soff, lp, ok))
def flag_store(a, soff):
    l = a.label("nf")
    a("s_barrier\ns_cmp_lg_u32 s44, 0\ns_cbranch_scc1 %s" % l)
    a("v_mov_b32 v186, s80\nv_mov_b32 v187, s62\nv_mov_b32 v188, 0\ns_mov_b64 s[84:85], exec\ns_mov_b64 exec, 1")
    a("buffer_store_dwordx2 v[186:187], v188, s[24:27], %s offen sc1\ns_mov_b64 exec, s[84:85]\n%s:" % (soff, l))

def gen_persist(opt):
    out = HDR + "; @launch grid=(256,1,1) block=(256,1,1) lds=151552\n"
    out += '.amdgcn_target "amdgcn-amd-amdhsa--gfx950"\n'
    a = Asm(opt); sc = " sc1"
    prologue(a, 256, "L_end")
    a("s_add_u32 s22, s20, 0x%x\ns_addc_u32 s23, s21, 0\ns_load_dword s80, s[22:23], 0" % FL)
    y_coords(a)
    a("s_lshl_b32 s60, s81, 5\ns_add_u32 s60, s60, 0x%x" % FX)
    a("s_mul_i32 s61, s49, 3\ns_lshr_b32 s61, s61, 1\ns_lshl_b32 s61, s61, 6\ns_add_u32 s61, s61, 0x%x" % FT)
    nonce = "s_waitcnt lgkmcnt(0)\ns_mul_i32 s80, s80, 0x9E3779B1\ns_add_u32 s80, s80, 0x7F4A7C15\ns_xor_b32 s62, s80, 0x5bd1e995\ns_mul_i32 s62, s62, 0x85EBCA6B"
    a("s_cmp_ge_u32 s45, 6\ns_cbranch_scc1 L_x")
    t_coords(a); stage_d_loads(a); t_setup(a)
    a("v_mov_b32 v160, v2\nv_mov_b32 v161, v3\nv_mov_b32 v162, v4\nv_mov_b32 v163, v5")
    vp = opt.get("vpre", 2)
    for st in range(vp): t_vload(a, st)
    a(nonce)
    stage_d_compute(a, sc)
    a("v_mov_b32 v2, v160\nv_mov_b32 v3, v161\nv_mov_b32 v4, v162\nv_mov_b32 v5, v163")
    a.stamp(1)
    vm = opt.get("vmid", 5)
    for st in range(vp, vm): t_vload(a, st)
    a.wvm("dst")
    a("s_lshl_b32 s59, s47, 8\ns_add_u32 s59, s59, 0x%x\ns_lshl_b32 s50, s48, 3\ns_add_u32 s58, s59, s50\ns_mul_i32 s50, s44, 48\ns_add_u32 s59, s59, s50" % FD)
    flag_store(a, "s58")
    vl = opt.get("vlate", 6)
    for st in range(vm, vl): t_vload(a, st)
    poll_issue(a, 180, 6, "s59")
    for st in range(vl, RV): t_vload(a, st)
    poll_check(a, 180, "s59")
    a.stamp(2)
    stage_t_main(a, sc, sc, RV, pre_store=lambda: poll_issue(a, 180, 4, "s60"))
    a("s_lshl_b32 s58, s48, 6\ns_lshl_b32 s50, s47, 3\ns_add_u32 s58, s58, s50\ns_add_u32 s58, s58, 0x%x" % FT)
    a("s_branch L_pub\nL_x:"); a.vm = []; a.lg = []
    a(nonce)
    stage_x(a, sc, pre_store=lambda: poll_issue(a, 180, 4, "s60"))
    a("s_lshl_b32 s58, s47, 5\ns_lshl_b32 s50, s48, 3\ns_add_u32 s58, s58, s50\ns_add_u32 s58, s58, 0x%x" % FX)
    a("L_pub:"); a.wall()
    flag_store(a, "s58")
    y_setup(a)
    poll_check(a, 180, "s60")
    xl = opt.get("xlate", 14)
    for ks in range(xl): y_xload(a, ks, sc)
    poll_issue(a, 180, 16, "s61")
    for ks in range(xl, 20): y_xload(a, ks, sc)
    poll_check(a, 180, "s61")
    stage_y_main(a, sc, True)
    a("s_or_b32 s50, s2, s44\ns_cmp_lg_u32 s50, 0\ns_cbranch_scc1 L_fin")
    a("s_mov_b32 s60, 0x%x" % FX)
    poll_issue(a, 180, 64, "s60"); a.wall(); poll_check(a, 180, "s60")
    a("v_mov_b32 v186, s80\nv_mov_b32 v188, 0\ns_mov_b32 s60, 0x%x\ns_mov_b64 exec, 1\nbuffer_store_dword v186, v188, s[24:27], s60 offen sc1\ns_mov_b64 exec, -1" % FL)
    a("L_fin:"); a.wall(); write_stamps(a, 0); a("L_end:\ns_endpgm")
    out += head(KN) + a.text() + kd(KN, 192+160, 192)
    return out

if __name__ == "__main__":
    opt = {}
    mode = sys.argv[1]; outp = sys.argv[2]
    for kv in sys.argv[3:]:
        k, v = kv.split("="); opt[k] = int(v) if v.lstrip("-").isdigit() else v
    open(outp, "w").write(globals()["gen_" + mode](opt))
```

```python
import sys
KN = "standalone__weight_only_int_quip__prompt_kernel"
WQ, TF, XF, FL, ST = 0x0, 0x200000, 0x400000, 0x700000, 0x780000
WS_BYTES = 0x800000

class Asm:
    def __init__(s, opt):
        s.L = []; s.vm = []; s.lg = []; s.opt = opt; s.nst = 0; s.uid = 0
    def __call__(s, t):
        for x in t.split("\n"):
            x = x.strip()
            if x: s.L.append(x if x.endswith(":") else "    " + x)
    def vmi(s, t, tag): s(t); s.vm.append(tag)
    def lgi(s, t, tag): s(t); s.lg.append(tag)
    def _n(s, q, tags):
        idx = [i for i, t in enumerate(q) if t in tags]
        if not idx: return None
        n = len(q) - 1 - max(idx)
        del q[:max(idx) + 1]
        return n
    def wvm(s, *tags):
        n = s._n(s.vm, tags)
        if n is not None: s("s_waitcnt vmcnt(%d)" % min(n, 63))
    def wlg(s, *tags):
        n = s._n(s.lg, tags)
        if n is not None: s("s_waitcnt lgkmcnt(%d)" % min(n, 15))
    def wall(s, vm=True, lg=True):
        s("s_waitcnt" + (" vmcnt(0)" if vm else "") + (" lgkmcnt(0)" if lg else ""))
        if vm: s.vm = []
        if lg: s.lg = []
    def stamp(s, i):
        if s.opt.get("stamps"):
            s("s_memrealtime s[%d:%d]\ns_memtime s[82:83]" % (64 + 2*i, 65 + 2*i)); s.wall(vm=False); s("s_mov_b32 s%d, s82" % (65 + 2*i))
    def label(s, b): s.uid += 1; return "L_%s_%d" % (b, s.uid)
    def text(s): return "\n".join(s.L) + "\n"

def srd(a, d, lo, nbytes):
    a("s_mov_b32 s%d, s%d\ns_and_b32 s%d, s%d, 0xffff\ns_mov_b32 s%d, 0x%x\ns_mov_b32 s%d, 0x20000" % (d, lo, d+1, lo+1, d+2, nbytes, d+3))

def prologue(a, nwg, end):
    a("s_cmp_ge_u32 s2, %d\ns_cbranch_scc1 %s" % (nwg, end))
    if a.opt.get("stamps"):
        for i in range(8): a("s_mov_b64 s[%d:%d], 0" % (64+2*i, 65+2*i))
    a.stamp(0)
    a("s_load_dwordx16 s[4:19], s[0:1], 0\ns_load_dwordx2 s[20:21], s[0:1], 64")
    a("v_lshrrev_b32 v2, 6, v0\nv_and_b32 v1, 63, v0\ns_and_b32 s45, s2, 7\nv_readfirstlane_b32 s44, v2\ns_lshr_b32 s46, s2, 3")
    a("v_lshlrev_b32 v10, 4, v1")
    a("s_waitcnt lgkmcnt(0)")
    srd(a, 24, 20, WS_BYTES)

def write_stamps(a, kidx):
    if not a.opt.get("stamps"): return
    a.stamp(7)
    l = a.label("nost")
    a("s_cmp_lg_u32 s44, 0\ns_cbranch_scc1 %s" % l)
    a("s_lshl_b32 s50, s2, 6\ns_add_u32 s50, s50, 0x%x" % (ST + kidx*0x4000))
    a("v_mov_b32 v2, 0")
    for i in range(4):
        for k in range(4): a("v_mov_b32 v%d, s%d" % (4+k, 64+4*i+k))
        a("buffer_store_dwordx4 v[4:7], v2, s[24:27], s50 offen offset:%d\ns_nop 1" % (16*i))
    if a.opt.get("dbg"):
        srd(a, 28, 18, 256)
        a("s_not_b32 s50, s64\nv_mov_b32 v4, s50")
        for i in range(8): a("v_writelane_b32 v4, s%d, %d" % (64+2*i, i+1))
        a("s_cmp_ge_u32 s45, 6\ns_cselect_b32 s50, 32, 0\nv_lshlrev_b32 v2, 2, v1\ns_movk_i32 s51, 0x1ff\ns_cselect_b32 exec_lo, 0xfe, s51\ns_mov_b32 exec_hi, 0")
        a("buffer_atomic_umax v4, v2, s[28:31], s50 offen")
    a("s_waitcnt vmcnt(0)\n%s:" % l)

def t_coords(a):
    a("s_cmp_ge_u32 s45, 3\ns_cselect_b32 s50, 1, 0\ns_mul_i32 s51, s50, 3\ns_sub_u32 s51, s45, s51")
    a("s_lshl_b32 s47, s50, 2\ns_lshr_b32 s52, s46, 3\ns_add_u32 s47, s47, s52")
    a("s_lshl_b32 s48, s51, 3\ns_and_b32 s52, s46, 7\ns_add_u32 s48, s48, s52")

DL = 131072
def stage_d_loads(a):
    srd(a, 28, 6, 640*1536*4); srd(a, 36, 8, 5*1536*2); srd(a, 40, 10, 5*1536*2)
    a("v_lshrrev_b32 v2, 4, v1\ns_mul_i32 s50, s44, 20\nv_add_u32 v2, s50, v2\nv_and_b32 v3, 15, v1")
    a("s_mul_i32 s51, s47, %d\ns_lshl_b32 s52, s48, 8\ns_add_u32 s51, s51, s52" % (80*6144))
    a("s_mul_i32 s52, s44, 5120\ns_add_u32 s52, s52, %d\ns_movk_i32 s53, 6144" % DL)
    for p in range(5):
        a("v_add_u32 v4, %d, v2\nv_and_b32 v5, 15, v4\nv_xor_b32 v5, v5, v3\nv_mul_u32_u24 v4, s53, v4\nv_lshl_add_u32 v4, v5, 4, v4" % (4*p))
        a("s_add_u32 m0, s52, %d\ns_nop 0" % (1024*p))
        a.vmi("buffer_load_dwordx4 v4, s[28:31], s51 offen lds", "qw")
    a("v_lshrrev_b32 v2, 4, v1\nv_lshlrev_b32 v2, 4, v2")
    a("s_and_b32 s52, s44, 1\ns_lshl_b32 s52, s52, 6\ns_lshl_b32 s53, s48, 7\ns_add_u32 s52, s52, s53")
    for u in range(3):
        a("s_lshr_b32 s53, s44, 1\ns_add_u32 s53, s53, %d\ns_min_u32 s53, s53, 4\ns_mul_i32 s54, s47, 5\ns_add_u32 s53, s53, s54\ns_lshr_b32 s53, s53, 3" % (2*u))
        a("s_mul_i32 s53, s53, 3072\ns_add_u32 s53, s53, s52")
        a.vmi("buffer_load_dwordx4 v[%d:%d], v2, s[36:39], s53 offen" % (128+8*u, 131+8*u), "sz")
        a.vmi("buffer_load_dwordx4 v[%d:%d], v2, s[40:43], s53 offen" % (132+8*u, 135+8*u), "sz")

def stage_d_compute(a, sc):
    a.wvm("qw", "sz"); a("s_barrier")
    a("v_and_b32 v2, 15, v1\nv_lshrrev_b32 v3, 4, v1\nv_lshlrev_b32 v3, 1, v3\ns_and_b32 s50, s44, 1\ns_lshl_b32 s50, s50, 3\nv_add_u32 v3, s50, v3")
    a("v_xor_b32 v4, v3, v2\nv_xor_b32 v5, 1, v4\ns_lshr_b32 s50, s44, 1\ns_lshl_b32 s50, s50, 12\ns_add_u32 s50, s50, %d" % DL)
    a("v_lshlrev_b32 v2, 8, v2\nv_add_u32 v2, s50, v2\nv_lshl_add_u32 v4, v4, 4, v2\nv_lshl_add_u32 v5, v5, 4, v2")
    a("s_mul_i32 s50, s47, 5\ns_lshr_b32 s51, s44, 1\ns_add_u32 s50, s50, s51\ns_mul_i32 s50, s50, 48\ns_lshl_b32 s51, s48, 1\ns_add_u32 s50, s50, s51")
    a("s_and_b32 s51, s44, 1\ns_add_u32 s50, s50, s51\ns_lshl_b32 s50, s50, 10\ns_add_u32 s50, s50, %d" % WQ)
    skip = a.label("dskip")
    for u in range(3):
        if u == 2: a("s_cmp_ge_u32 s44, 2\ns_cbranch_scc1 %s" % skip)
        q = 16 + 8*u
        a.lgi("ds_read_b128 v[%d:%d], v4 offset:%d" % (q, q+3, 8192*u), "dq%d" % u)
        a.lgi("ds_read_b128 v[%d:%d], v5 offset:%d" % (q+4, q+7, 8192*u), "dq%d" % u)
        s0, z0, t = 128+8*u, 132+8*u, 48
        for k in range(4):
            a("v_lshlrev_b32 v%d, 16, v%d\nv_and_b32 v%d, 0xffff0000, v%d" % (t+2*k, s0+k, t+2*k+1, s0+k))
            a("v_lshlrev_b32 v%d, 16, v%d\nv_and_b32 v%d, 0xffff0000, v%d" % (t+8+2*k, z0+k, t+8+2*k+1, z0+k))
        a.wlg("dq%d" % u)
        for k in range(8): a("v_cvt_f32_i32 v%d, v%d" % (q+k, q+k))
        for k in range(8): a("v_sub_f32 v%d, v%d, v%d" % (q+k, q+k, t+8+k))
        for k in range(8): a("v_mul_f32 v%d, v%d, v%d" % (q+k, q+k, t+k))
        o = 64 + 4*u
        for k in range(4): a("v_cvt_pk_bf16_f32 v%d, v%d, v%d" % (o+k, q+2*k, q+2*k+1))
        a("s_add_u32 s51, s50, %d" % (u*2*48*1024))
        a("buffer_store_dwordx4 v[%d:%d], v10, s[24:27], s51 offen%s" % (o, o+3, sc))
        if u < 2: a.vm.append("dst")
    a("%s:" % skip)

RV, NA = 8, 4
def t_setup(a):
    srd(a, 32, 14, 1536*1536*2)
    a("v_lshrrev_b32 v6, 3, v1\nv_and_b32 v7, 7, v1\nv_lshrrev_b32 v8, 2, v1\nv_and_b32 v8, 4, v8\nv_xor_b32 v7, v7, v8")
    a("s_movk_i32 s50, 3072\nv_mul_u32_u24 v6, s50, v6\nv_lshl_add_u32 v2, v7, 4, v6")
    for p in range(1, 4): a("v_add_u32 v%d, %d, v2" % (2+p, p*(24576-1024)))
    a("v_lshrrev_b32 v11, 4, v1\nv_lshlrev_b32 v11, 3, v11\nv_bfe_u32 v12, v1, 2, 2\nv_add_u32 v11, v11, v12\nv_lshlrev_b32 v11, 7, v11")
    a("v_and_b32 v12, 3, v1\nv_lshrrev_b32 v13, 1, v1\nv_and_b32 v13, 4, v13\nv_xor_b32 v12, v12, v13\nv_lshl_add_u32 v11, v12, 4, v11")
    a("s_mul_i32 s53, s44, %d" % (RV*4096))
    for b in range(4):
        a("s_add_u32 s50, s44, %d\ns_and_b32 s51, s50, 1\ns_lshl_b32 s51, s51, 3\ns_add_u32 s51, s51, s53\ns_and_b32 s50, s50, 2\ns_lshl_b32 s50, s50, 5" % b)
        a("v_xor_b32 v%d, s50, v11\nv_add_u32 v%d, s51, v%d" % (6+b, 6+b, 6+b))
    a("s_mul_i32 s55, s44, %d\ns_lshl_b32 s50, s48, 7\ns_add_u32 s55, s55, s50" % (12*32*3072))
    a("s_mul_i32 s56, s47, %d\ns_mul_i32 s50, s44, %d\ns_add_u32 s56, s56, s50\ns_add_u32 s56, s56, %d" % (5*48*1024, 12*1024, WQ))
    a("s_mov_b32 s57, s53")
def t_vload1(a, s, p):
    a("s_add_u32 m0, s57, %d\ns_add_u32 s50, s55, %d" % ((s % RV)*4096, s*32*3072))
    a.vmi("buffer_load_dwordx4 v%d, s[32:35], s50 offen offset:%d lds" % (2+p, 1024*p), "V%d" % s)
def t_vload(a, s):
    a("s_add_u32 m0, s57, %d\ns_add_u32 s50, s55, %d" % ((s % RV)*4096, s*32*3072))
    for p in range(4):
        a.vmi("buffer_load_dwordx4 v%d, s[32:35], s50 offen offset:%d lds" % (2+p, 1024*p), "V%d" % s)
def t_aload1(a, s, b, sc):
    NA = a.opt.get("na", 4)
    r = (s % NA)*20 + 4*b
    a("s_add_u32 s50, s56, %d" % (b*48*1024 + s*1024))
    a.vmi("buffer_load_dwordx4 a[%d:%d], v10, s[24:27], s50 offen%s" % (r, r+3, sc), "A%d" % s)
def t_bread(a, s, b, t):
    r = 96 + (s & 1)*16 + 4*b + 2*t
    a.lgi("ds_read_b64_tr_b16 v[%d:%d], v%d offset:%d" % (r, r+1, 6+b, (s % RV)*4096 + t*512), "B%d" % s)
def stage_t_main(a, ldsc, stsc, vdone, pre_store=None):
    ACC = 16
    NA = a.opt.get("na", 4)
    for s in range(RV):
        if s >= vdone: t_vload(a, s)
        if s < NA:
            for b in range(5): t_aload1(a, s, b, ldsc)
    a.wvm("V0")
    for b in range(4):
        for t in range(2): t_bread(a, 0, b, t)
    vq = [(s, p) for s in range(RV, 12) for p in range(4)]
    for s in range(12):
        a.wvm("A%d" % s, "V%d" % (s+1)); a.wlg("B%d" % s)
        if s == 0: a.stamp(3)
        n = 0
        for db in range(5):
            for b in range(4):
                c = ACC + (b*5+db)*4; ar = (s % NA)*20 + 4*db; br = 96 + (s & 1)*16 + 4*b
                a("v_mfma_f32_16x16x32_bf16 v[%d:%d], a[%d:%d], v[%d:%d], %s" % (c, c+3, ar, ar+3, br, br+3, "0" if s == 0 else "v[%d:%d]" % (c, c+3)))
                if s+1 < 12 and n < 16 and (n & 1) == 0: t_bread(a, s+1, n >> 2, (n >> 1) & 1)
                if b == 3 and s + NA < 12: t_aload1(a, s+NA, db, ldsc)
                if b == 1 and db in (1, 3) and vq and vq[0][0] - RV <= s: t_vload1(a, *vq.pop(0))
                n += 1
    assert not vq
    a.stamp(4)
    a("s_barrier\ns_nop 7")
    for b in range(1, 4):
        a("s_add_u32 s50, s44, %d\ns_and_b32 s50, s50, 3\ns_mul_i32 s50, s50, %d\ns_add_u32 s50, s50, %d\nv_add_u32 v2, s50, v10" % (b, 15360, (b-1)*5120))
        for db in range(5):
            c = ACC + (b*5+db)*4
            a.lgi("ds_write_b128 v2, v[%d:%d] offset:%d" % (c, c+3, db*1024), "rw")
    a("s_mul_i32 s50, s44, 15360\nv_add_u32 v2, s50, v10")
    a.wall(vm=False); a("s_barrier")
    for db in range(5):
        for b in range(3):
            r = 36 + (db*3+b)*4
            a.lgi("ds_read_b128 v[%d:%d], v2 offset:%d" % (r, r+3, b*5120 + db*1024), "rr%d" % db)
    if pre_store: pre_store()
    a("s_lshl_b32 s50, s48, 2\ns_add_u32 s50, s50, s44\ns_mul_i32 s50, s50, 20\ns_lshr_b32 s51, s47, 1\ns_mul_i32 s51, s51, 5\ns_add_u32 s50, s50, s51")
    a("s_lshl_b32 s50, s50, 10\ns_add_u32 s50, s50, %d\ns_and_b32 s51, s47, 1\ns_lshl_b32 s52, s51, 11\ns_add_u32 s52, s52, s50" % TF)
    a("s_lshl_b32 s51, s51, 9\ns_add_u32 s51, s51, s50\ns_add_u32 s51, s51, 4096\nv_lshlrev_b32 v3, 3, v1")
    for db in range(5):
        a.wlg("rr%d" % db)
        c = ACC + db*4; r = 36 + db*12
        for k in range(0, 4, 2):
            a("v_pk_add_f32 v[%d:%d], v[%d:%d], v[%d:%d]" % (c+k, c+k+1, c+k, c+k+1, r+k, r+k+1))
            a("v_pk_add_f32 v[%d:%d], v[%d:%d], v[%d:%d]" % (r+4+k, r+5+k, r+4+k, r+5+k, r+8+k, r+9+k))
        for k in range(0, 4, 2):
            a("v_pk_add_f32 v[%d:%d], v[%d:%d], v[%d:%d]" % (c+k, c+k+1, c+k, c+k+1, r+4+k, r+5+k))
        o = 96 + 2*db
        a("v_cvt_pk_bf16_f32 v%d, v%d, v%d\nv_cvt_pk_bf16_f32 v%d, v%d, v%d" % (o, c, c+1, o+1, c+2, c+3))
        if db in (1, 3): a.vmi("buffer_store_dwordx4 v[%d:%d], v10, s[24:27], s52 offen offset:%d%s" % (o-2, o+1, (db >> 1)*1024, stsc), "tst")
        if db == 4: a.vmi("buffer_store_dwordx2 v[%d:%d], v3, s[24:27], s51 offen%s" % (o, o+1, stsc), "tst")

XS = 36864
def stage_x(a, stsc, pre_store=None):
    srd(a, 28, 4, 2048*640*2); srd(a, 32, 12, 640*640*2)
    a("s_sub_u32 s47, s45, 6\ns_lshl_b32 s47, s47, 3\ns_lshr_b32 s50, s46, 2\ns_add_u32 s47, s47, s50\ns_and_b32 s48, s46, 3")
    a("s_movk_i32 s53, 1280\nv_lshrrev_b32 v11, 3, v1\ns_lshl_b32 s50, s44, 5\nv_add_u32 v11, s50, v11\nv_and_b32 v12, 7, v1\nv_lshrrev_b32 v13, 4, v1")
    for p in range(4):
        a("v_add_u32 v14, %d, v13\nv_and_b32 v14, 7, v14\nv_xor_b32 v14, v14, v12\nv_add_u32 v15, %d, v11\nv_mul_u32_u24 v15, s53, v15" % (4*p, 8*p))
        a("v_lshl_add_u32 v%d, v14, 4, v15" % (2+p))
        if p: a("v_subrev_u32 v%d, %d, v%d" % (2+p, 1024*p, 2+p))
    a("s_movk_i32 s54, 3277\ns_lshl_b32 s50, s44, 4")
    UR = [6, 7, 8, 9, 11]
    for p in range(5):
        a("v_add_u32 v12, %d, v1\nv_mul_u32_u24 v13, s54, v12\nv_lshrrev_b32 v13, 16, v13\nv_mul_u32_u24 v14, 20, v13\nv_sub_u32 v12, v12, v14" % (64*p))
        a("v_lshrrev_b32 v14, 2, v13\nv_and_b32 v14, 2, v14\nv_xor_b32 v12, v12, v14\nv_add_u32 v13, s50, v13\nv_mul_u32_u24 v13, s53, v13\nv_lshl_add_u32 v%d, v12, 4, v13" % UR[p])
        if 0 < p < 4: a("v_subrev_u32 v%d, %d, v%d" % (UR[p], 1024*p, UR[p]))
    a("s_mul_i32 s55, s47, %d\ns_mul_i32 s56, s48, 320\ns_lshl_b32 s57, s44, 12\ns_mul_i32 s58, s44, 5120\ns_add_u32 s58, s58, 16384" % (128*1280))
    def dma1(st, i):
        sl = (st % 4)*XS
        if i < 4:
            a("s_add_u32 m0, s57, %d\ns_add_u32 s50, s55, %d" % (sl, st*128))
            a.vmi("buffer_load_dwordx4 v%d, s[28:31], s50 offen offset:%d lds" % (2+i, 1024*i), "S%d" % st)
        else:
            p = i - 4
            a("s_add_u32 m0, s58, %d\ns_add_u32 s50, s56, %d" % (sl + (4096 if p == 4 else 0), st*64*1280))
            a.vmi("buffer_load_dwordx4 v%d, s[32:35], s50 offen offset:%d lds" % (UR[p], 1024*(p & 3) if p < 4 else 0), "S%d" % st)
    def dma(st):
        for i in range(9): dma1(st, i)
    XP = a.opt.get('xpre', 2)
    for st in range(XP): dma(st)
    dq = [(st, i) for st in range(XP, 10) for i in range(9)]
    free = 4
    a("v_and_b32 v12, 15, v1\nv_lshrrev_b32 v13, 4, v1\nv_lshrrev_b32 v14, 1, v12\nv_xor_b32 v14, v14, v13\ns_lshr_b32 s50, s44, 1\ns_lshl_b32 s50, s50, 13")
    a("v_lshlrev_b32 v12, 7, v12\nv_lshl_add_u32 v12, v14, 4, v12\nv_add_u32 v176, s50, v12\nv_xor_b32 v177, 64, v176")
    a("v_add_u32 v178, %d, v176\nv_add_u32 v179, %d, v177" % (2*XS, 2*XS))
    a("v_lshlrev_b32 v12, 3, v13\nv_bfe_u32 v14, v1, 2, 2\nv_add_u32 v12, v12, v14\ns_movk_i32 s50, 320\nv_mul_u32_u24 v12, s50, v12\nv_and_b32 v14, 3, v1\nv_lshl_add_u32 v12, v14, 3, v12")
    a("s_and_b32 s50, s44, 1\ns_mul_i32 s51, s50, 160\ns_add_u32 s51, s51, 16384\nv_add_u32 v12, s51, v12\nv_and_b32 v13, 1, v13\nv_lshlrev_b32 v13, 5, v13")
    a("s_lshl_b32 s50, s50, 1\ns_sub_u32 s50, 1, s50\nv_mul_lo_u32 v13, v13, s50\nv_add_u32 v180, v12, v13\nv_sub_u32 v181, v12, v13")
    a("v_add_u32 v182, %d, v180\nv_add_u32 v183, %d, v181" % (2*XS, 2*XS))
    ACC = 16; FB = 96
    def reads(u):
        st, k = u >> 1, u & 1; sl = st % 4; hi = (sl >> 1)*2; lo = (sl & 1)*XS; fb = FB + 36*(u & 1)
        R = []
        for i in range(5):
            if i < 4: R.append("ds_read_b128 v[%d:%d], v%d offset:%d" % (fb+4*i, fb+4*i+3, 176+hi+k, lo + i*2048))
            for t in range(2):
                r = fb + 16 + 4*i + 2*t
                R.append("ds_read_b64_tr_b16 v[%d:%d], v%d offset:%d" % (r, r+1, 180+hi+(i & 1), lo + (32*k+4*t)*320 + 32*i))
        return R
    a.wvm("S0"); a("s_barrier")
    a.stamp(1)
    for r in reads(0): a.lgi(r, "F0")
    for u in range(20):
        a.wlg("F%d" % u)
        R = reads(u+1) if u < 19 else []
        fb = FB + 36*(u & 1); n = 0
        for eb in range(5):
            for mb in range(4):
                c = ACC + (eb*4+mb)*4; ar = fb + 16 + 4*eb; br = fb + 4*mb
                a("v_mfma_f32_16x16x32_bf16 v[%d:%d], v[%d:%d], v[%d:%d], %s" % (c, c+3, ar, ar+3, br, br+3, "0" if u == 0 else "v[%d:%d]" % (c, c+3)))
                if n == 1 and (u & 1) and u < 19:
                    st = u >> 1
                    a.wvm("S%d" % (st+1)); a("s_barrier"); free = st + 5
                if n >= 1 and R: a.lgi(R.pop(0), "F%d" % (u+1))
                if n % a.opt.get('xev', 4) == a.opt.get('xev', 4) - 1 and dq and dq[0][0] < free: dma1(*dq.pop(0))
                n += 1
        assert not R
    a.stamp(4)
    assert not dq
    if pre_store: pre_store()
    a("s_lshl_b32 s50, s47, 3\ns_lshr_b32 s51, s44, 1\ns_lshl_b32 s51, s51, 2\ns_add_u32 s50, s50, s51\ns_mul_i32 s50, s50, 20\ns_mul_i32 s51, s48, 5\ns_add_u32 s50, s50, s51")
    a("s_lshl_b32 s50, s50, 10\ns_add_u32 s50, s50, %d\ns_and_b32 s51, s44, 1\ns_lshl_b32 s52, s51, 11\ns_add_u32 s52, s52, s50" % XF)
    a("s_lshl_b32 s51, s51, 9\ns_add_u32 s51, s51, s50\ns_add_u32 s51, s51, 4096\nv_lshlrev_b32 v3, 3, v1\ns_nop 3")
    for mb in range(4):
        o = 96 + 12*mb
        for eb in range(5):
            c = ACC + (eb*4+mb)*4
            a("v_cvt_pk_bf16_f32 v%d, v%d, v%d\nv_cvt_pk_bf16_f32 v%d, v%d, v%d" % (o+2*eb, c, c+1, o+2*eb+1, c+2, c+3))
            if eb in (1, 3): a.vmi("buffer_store_dwordx4 v[%d:%d], v10, s[24:27], s52 offen offset:%d%s" % (o+2*eb-2, o+2*eb+1, (eb >> 1)*1024, stsc), "xst")
            if eb == 4: a.vmi("buffer_store_dwordx2 v[%d:%d], v3, s[24:27], s51 offen%s" % (o+8, o+9, stsc), "xst")
        if mb < 3: a("s_add_u32 s52, s52, 20480\ns_add_u32 s51, s51, 20480")

def y_coords(a):
    a("s_lshr_b32 s81, s45, 1\ns_lshl_b32 s81, s81, 2\ns_lshr_b32 s50, s46, 3\ns_add_u32 s81, s81, s50")
    a("s_and_b32 s49, s45, 1\ns_lshl_b32 s49, s49, 3\ns_and_b32 s50, s46, 7\ns_add_u32 s49, s49, s50")
def y_setup(a):
    a("s_mov_b32 s47, s81\ns_mov_b32 s48, s49")
    srd(a, 28, 16, 2048*1536*2)
    a("v_lshlrev_b32 v11, 3, v1\nv_add_u32 v12, 4096, v11\nv_add_u32 v13, 61440, v10\nv_add_u32 v14, 61440, v11")
    a("s_lshl_b32 s55, s47, 3\ns_lshl_b32 s50, s44, 1\ns_add_u32 s55, s55, s50\ns_mul_i32 s55, s55, 20480\ns_add_u32 s55, s55, %d" % XF)
    a("s_mul_i32 s56, s48, 122880\ns_add_u32 s56, s56, %d" % TF)
    for i in range(3):
        a("s_mul_i32 s50, s44, 3\ns_add_u32 s50, s50, %d\ns_and_b32 s51, s50, 1\ns_lshr_b32 s50, s50, 1\ns_mul_i32 s50, s50, 20480\ns_lshl_b32 s51, s51, 10\ns_add_u32 s%d, s50, s51" % (i, 57+i))
def y_xload(a, ks, sc):
    G, r = divmod(ks, 5)
    for mb in range(2):
        d = (ks*2+mb)*4
        a("s_add_u32 s50, s55, %d" % (mb*20480 + G*5120))
        if r < 4: a.vmi("buffer_load_dwordx4 a[%d:%d], v10, s[24:27], s50 offen offset:%d%s" % (d, d+3, r*1024, sc), "X%d" % ks)
        else:
            for h in range(2): a.vmi("buffer_load_dwordx2 a[%d:%d], v12, s[24:27], s50 offen offset:%d%s" % (d+2*h, d+2*h+1, h*512, sc), "X%d" % ks)
def y_tload1(a, st, i, sc):
    a("s_add_u32 m0, s%d, %d\ns_add_u32 s50, s56, m0" % (57+i, st*2048))
    a.vmi("buffer_load_dwordx4 v10, s[24:27], s50 offen%s lds" % sc, "T%d" % st)
def stage_y_main(a, sc, xfirst):
    ACC = 16; FB = 64
    q = []
    for st in range(10):
        q += [lambda st=st, i=i: y_tload1(a, st, i, sc) for i in range(3)]
        if not xfirst: q += [lambda k=2*st: y_xload(a, k, sc), lambda k=2*st+1: y_xload(a, k, sc)]
    for i in range(a.opt.get("ypre", 2)*(3 if xfirst else 5)): q.pop(0)()
    ev = a.opt.get("yev", 4)
    def reads(ks):
        R = []; fb = FB + 24*(ks & 1)
        for nb in range(6):
            off = (nb % 3)*20480 + ks*1024; r = fb + 4*nb
            if ks % 5 < 4: R.append(["ds_read_b128 v[%d:%d], v%d offset:%d" % (r, r+3, 10 if nb < 3 else 13, off)])
            else: R.append(["ds_read_b64 v[%d:%d], v%d offset:%d" % (r+2*h, r+2*h+1, 11 if nb < 3 else 14, off+512*h) for h in range(2)])
        return R
    a.wvm("T0"); a("s_barrier")
    a.stamp(5)
    for rr in reads(0):
        for r in rr: a.lgi(r, "F0")
    for ks in range(20):
        a.wvm("X%d" % ks); a.wlg("F%d" % ks)
        R = reads(ks+1) if ks < 19 else []
        fb = FB + 24*(ks & 1); n = 0
        for nb in range(6):
            for mb in range(2):
                c = ACC + (nb*2+mb)*4; ar = fb + 4*nb; br = (ks*2+mb)*4
                a("v_mfma_f32_16x16x32_bf16 v[%d:%d], v[%d:%d], a[%d:%d], %s" % (c, c+3, ar, ar+3, br, br+3, "0" if ks == 0 else "v[%d:%d]" % (c, c+3)))
                if n == 1 and (ks & 1) and ks < 19:
                    a.wvm("T%d" % ((ks >> 1)+1)); a("s_barrier")
                if n >= 1 and R:
                    for r in R.pop(0): a.lgi(r, "F%d" % (ks+1))
                if n % ev == ev - 1 and q: q.pop(0)()
                n += 1
    assert not q
    a.stamp(6)
    a("v_and_b32 v2, 15, v1\nv_lshrrev_b32 v3, 4, v1\ns_movk_i32 s50, 3072\nv_mul_u32_u24 v2, s50, v2\nv_lshl_add_u32 v2, v3, 4, v2")
    a("s_lshl_b32 s50, s47, 2\ns_add_u32 s50, s50, s44\ns_mul_i32 s50, s50, %d\ns_mul_i32 s51, s48, 192\ns_add_u32 s50, s50, s51\ns_add_u32 s51, s50, %d\ns_nop 1" % (32*3072, 16*3072))
    for P in range(3):
        for mb in range(2):
            o = FB + (P*2+mb)*4
            for sub in range(2):
                c = ACC + ((2*P+sub)*2+mb)*4
                a("v_cvt_pk_bf16_f32 v%d, v%d, v%d\nv_cvt_pk_bf16_f32 v%d, v%d, v%d" % (o+2*sub, c, c+1, o+2*sub+1, c+2, c+3))
            a.vmi("buffer_store_dwordx4 v[%d:%d], v2, s[28:31], s%d offen offset:%d%s" % (o, o+3, 50+mb, 64*P, a.opt.get("ysc", "")), "yst")

def kd(name, vg, acc):
    return """.section .rodata,"a"
.p2align 6
.amdhsa_kernel %s
  .amdhsa_next_free_vgpr %d
  .amdhsa_next_free_sgpr 96
  .amdhsa_accum_offset %d
  .amdhsa_group_segment_fixed_size 0
  .amdhsa_kernarg_size 72
  .amdhsa_user_sgpr_count 2
  .amdhsa_user_sgpr_kernarg_segment_ptr 1
  .amdhsa_system_sgpr_workgroup_id_x 1
.end_amdhsa_kernel
""" % (name, vg, acc)
def head(name): return ".text\n.globl %s\n.p2align 8\n.type %s,@function\n%s:\n" % (name, name, name)
HDR = open("standalone__weight_only_int_quip__prompt.s.ref").read().split("; Override")[0] if len(sys.argv) > 0 else ""

def gen_multi(opt):
    out = HDR
    out += "; @launch kernel=qd_kernel grid=(256,1,1) block=(256,1,1) lds=151552\n"
    out += "; @launch kernel=qtx_kernel grid=(256,1,1) block=(256,1,1) lds=147456\n"
    out += "; @launch kernel=qy_kernel grid=(256,1,1) block=(256,1,1) lds=122880\n"
    out += '.amdgcn_target "amdgcn-amd-amdhsa--gfx950"\n'
    a = Asm(opt); prologue(a, 256, "L_d_end"); a("s_cmp_ge_u32 s45, 6\ns_cbranch_scc1 L_d_end")
    t_coords(a); stage_d_loads(a); stage_d_compute(a, ""); a.wall(); write_stamps(a, 0); a("L_d_end:\ns_endpgm")
    out += head("qd_kernel") + a.text()
    a = Asm(opt); a.uid = 100; prologue(a, 256, "L_tx_end"); a("s_cmp_ge_u32 s45, 6\ns_cbranch_scc1 L_x")
    t_coords(a); t_setup(a)
    stage_t_main(a, "", "", 0); a("s_branch L_tx_fin\nL_x:"); a.vm = []; a.lg = []
    stage_x(a, ""); a("L_tx_fin:"); a.wall(); write_stamps(a, 1); a("L_tx_end:\ns_endpgm")
    out += head("qtx_kernel") + a.text()
    a = Asm(opt); a.uid = 200; prologue(a, 256, "L_y_end"); y_coords(a); y_setup(a); stage_y_main(a, "", False); a.wall(); write_stamps(a, 2); a("L_y_end:\ns_endpgm")
    out += head("qy_kernel") + a.text()
    out += kd("qd_kernel", 160, 160) + kd("qtx_kernel", 192+80, 192) + kd("qy_kernel", 128+160, 128)
    return out

FD, FT, FX = FL + 0x1000, FL + 0x2000, FL + 0x3000
SPIN = 20000
def poll_issue(a, r, n, soff):
    a("v_min_u32 v%d, %d, v1\nv_lshlrev_b32 v%d, 3, v%d" % (r+2, n-1, r+2, r+2))
    a.vmi("buffer_load_dwordx2 v[%d:%d], v%d, s[24:27], %s offen sc1" % (r, r+1, r+2, soff), "poll%d" % r)
def poll_check(a, r, soff):
    a.wvm("poll%d" % r)
    lp, ok = a.label("spin"), a.label("ok")
    a("s_movk_i32 s63, %d\n%s:" % (SPIN, lp))
    a("v_cmp_ne_u32 vcc, s80, v%d\nv_cmp_ne_u32 s[84:85], s62, v%d\ns_or_b64 vcc, vcc, s[84:85]\ns_cbranch_vccz %s" % (r, r+1, ok))
    a("s_sub_u32 s63, s63, 1\ns_cmp_eq_u32 s63, 0\ns_cbranch_scc1 %s" % ok)
    if a.opt.get("sleep"): a("s_sleep %d" % a.opt["sleep"])
    a("buffer_load_dwordx2 v[%d:%d], v%d, s[24:27], %s offen sc1\ns_waitcnt vmcnt(0)\ns_branch %s\n%s:" % (r, r+1, r+2, soff, lp, ok))
def flag_store(a, soff):
    l = a.label("nf")
    a("s_barrier\ns_cmp_lg_u32 s44, 0\ns_cbranch_scc1 %s" % l)
    a("v_mov_b32 v186, s80\nv_mov_b32 v187, s62\nv_mov_b32 v188, 0\ns_mov_b64 s[84:85], exec\ns_mov_b64 exec, 1")
    a("buffer_store_dwordx2 v[186:187], v188, s[24:27], %s offen sc1\ns_mov_b64 exec, s[84:85]\n%s:" % (soff, l))

def gen_persist(opt):
    out = HDR + "; @launch grid=(256,1,1) block=(256,1,1) lds=151552\n"
    out += '.amdgcn_target "amdgcn-amd-amdhsa--gfx950"\n'
    a = Asm(opt); sc = " sc1"
    prologue(a, 256, "L_end")
    a("s_add_u32 s22, s20, 0x%x\ns_addc_u32 s23, s21, 0\ns_load_dword s80, s[22:23], 0" % FL)
    y_coords(a)
    a("s_lshl_b32 s60, s81, 5\ns_add_u32 s60, s60, 0x%x" % FX)
    a("s_mul_i32 s61, s49, 3\ns_lshr_b32 s61, s61, 1\ns_lshl_b32 s61, s61, 6\ns_add_u32 s61, s61, 0x%x" % FT)
    nonce = "s_waitcnt lgkmcnt(0)\ns_mul_i32 s80, s80, 0x9E3779B1\ns_add_u32 s80, s80, 0x7F4A7C15\ns_xor_b32 s62, s80, 0x5bd1e995\ns_mul_i32 s62, s62, 0x85EBCA6B"
    a("s_cmp_ge_u32 s45, 6\ns_cbranch_scc1 L_x")
    t_coords(a); stage_d_loads(a); t_setup(a)
    a("v_mov_b32 v160, v2\nv_mov_b32 v161, v3\nv_mov_b32 v162, v4\nv_mov_b32 v163, v5")
    vp = opt.get("vpre", 2)
    for st in range(vp): t_vload(a, st)
    a(nonce)
    stage_d_compute(a, sc)
    a("v_mov_b32 v2, v160\nv_mov_b32 v3, v161\nv_mov_b32 v4, v162\nv_mov_b32 v5, v163")
    a.stamp(1)
    vm = opt.get("vmid", 5)
    for st in range(vp, vm): t_vload(a, st)
    a.wvm("dst")
    a("s_lshl_b32 s59, s47, 8\ns_add_u32 s59, s59, 0x%x\ns_lshl_b32 s50, s48, 3\ns_add_u32 s58, s59, s50\ns_mul_i32 s50, s44, 48\ns_add_u32 s59, s59, s50" % FD)
    flag_store(a, "s58")
    vl = opt.get("vlate", 6)
    for st in range(vm, vl): t_vload(a, st)
    poll_issue(a, 180, 6, "s59")
    for st in range(vl, RV): t_vload(a, st)
    poll_check(a, 180, "s59")
    a.stamp(2)
    stage_t_main(a, sc, sc, RV, pre_store=lambda: poll_issue(a, 180, 4, "s60"))
    a("s_lshl_b32 s58, s48, 6\ns_lshl_b32 s50, s47, 3\ns_add_u32 s58, s58, s50\ns_add_u32 s58, s58, 0x%x" % FT)
    a("s_branch L_pub\nL_x:"); a.vm = []; a.lg = []
    a(nonce)
    stage_x(a, sc, pre_store=lambda: poll_issue(a, 180, 4, "s60"))
    a("s_lshl_b32 s58, s47, 5\ns_lshl_b32 s50, s48, 3\ns_add_u32 s58, s58, s50\ns_add_u32 s58, s58, 0x%x" % FX)
    a("L_pub:"); a.wall()
    flag_store(a, "s58")
    y_setup(a)
    poll_check(a, 180, "s60")
    xl = opt.get("xlate", 14)
    for ks in range(xl): y_xload(a, ks, sc)
    poll_issue(a, 180, 16, "s61")
    for ks in range(xl, 20): y_xload(a, ks, sc)
    poll_check(a, 180, "s61")
    stage_y_main(a, sc, True)
    a("s_or_b32 s50, s2, s44\ns_cmp_lg_u32 s50, 0\ns_cbranch_scc1 L_fin")
    a("s_mov_b32 s60, 0x%x" % FX)
    poll_issue(a, 180, 64, "s60"); a.wall(); poll_check(a, 180, "s60")
    a("v_mov_b32 v186, s80\nv_mov_b32 v188, 0\ns_mov_b32 s60, 0x%x\ns_mov_b64 exec, 1\nbuffer_store_dword v186, v188, s[24:27], s60 offen sc1\ns_mov_b64 exec, -1" % FL)
    a("L_fin:"); a.wall(); write_stamps(a, 0); a("L_end:\ns_endpgm")
    out += head(KN) + a.text() + kd(KN, 192+160, 192)
    return out

if __name__ == "__main__":
    opt = {}
    mode = sys.argv[1]; outp = sys.argv[2]
    for kv in sys.argv[3:]:
        k, v = kv.split("="); opt[k] = int(v) if v.lstrip("-").isdigit() else v
    open(outp, "w").write(globals()["gen_" + mode](opt))
```

```python
import sys
KN = "standalone__weight_only_int_quip__prompt_kernel"
WQ, TF, XF, FL, ST = 0x0, 0x200000, 0x400000, 0x700000, 0x780000
WS_BYTES = 0x800000

class Asm:
    def __init__(s, opt):
        s.L = []; s.vm = []; s.lg = []; s.opt = opt; s.nst = 0; s.uid = 0
    def __call__(s, t):
        for x in t.split("\n"):
            x = x.strip()
            if x: s.L.append(x if x.endswith(":") else "    " + x)
    def vmi(s, t, tag): s(t); s.vm.append(tag)
    def lgi(s, t, tag): s(t); s.lg.append(tag)
    def _n(s, q, tags):
        idx = [i for i, t in enumerate(q) if t in tags]
        if not idx: return None
        n = len(q) - 1 - max(idx)
        del q[:max(idx) + 1]
        return n
    def wvm(s, *tags):
        n = s._n(s.vm, tags)
        if n is not None: s("s_waitcnt vmcnt(%d)" % min(n, 63))
    def wlg(s, *tags):
        n = s._n(s.lg, tags)
        if n is not None: s("s_waitcnt lgkmcnt(%d)" % min(n, 15))
    def wall(s, vm=True, lg=True):
        s("s_waitcnt" + (" vmcnt(0)" if vm else "") + (" lgkmcnt(0)" if lg else ""))
        if vm: s.vm = []
        if lg: s.lg = []
    def stamp(s, i):
        if s.opt.get("stamps"):
            s("s_memrealtime s[%d:%d]\ns_memtime s[82:83]" % (64 + 2*i, 65 + 2*i)); s.wall(vm=False); s("s_mov_b32 s%d, s82" % (65 + 2*i))
    def label(s, b): s.uid += 1; return "L_%s_%d" % (b, s.uid)
    def text(s): return "\n".join(s.L) + "\n"

def srd(a, d, lo, nbytes):
    a("s_mov_b32 s%d, s%d\ns_and_b32 s%d, s%d, 0xffff\ns_mov_b32 s%d, 0x%x\ns_mov_b32 s%d, 0x20000" % (d, lo, d+1, lo+1, d+2, nbytes, d+3))

def prologue(a, nwg, end):
    a("s_cmp_ge_u32 s2, %d\ns_cbranch_scc1 %s" % (nwg, end))
    if a.opt.get("stamps"):
        for i in range(8): a("s_mov_b64 s[%d:%d], 0" % (64+2*i, 65+2*i))
    a.stamp(0)
    a("s_load_dwordx16 s[4:19], s[0:1], 0\ns_load_dwordx2 s[20:21], s[0:1], 64")
    a("v_lshrrev_b32 v2, 6, v0\nv_and_b32 v1, 63, v0\ns_and_b32 s45, s2, 7\nv_readfirstlane_b32 s44, v2\ns_lshr_b32 s46, s2, 3")
    a("v_lshlrev_b32 v10, 4, v1")
    a("s_waitcnt lgkmcnt(0)")
    srd(a, 24, 20, WS_BYTES)

def write_stamps(a, kidx):
    if not a.opt.get("stamps"): return
    a.stamp(7)
    l = a.label("nost")
    a("s_cmp_lg_u32 s44, 0\ns_cbranch_scc1 %s" % l)
    a("s_lshl_b32 s50, s2, 6\ns_add_u32 s50, s50, 0x%x" % (ST + kidx*0x4000))
    a("v_mov_b32 v2, 0")
    for i in range(4):
        for k in range(4): a("v_mov_b32 v%d, s%d" % (4+k, 64+4*i+k))
        a("buffer_store_dwordx4 v[4:7], v2, s[24:27], s50 offen offset:%d\ns_nop 1" % (16*i))
    if a.opt.get("dbg"):
        srd(a, 28, 18, 256)
        a("s_not_b32 s50, s64\nv_mov_b32 v4, s50")
        for i in range(8): a("v_writelane_b32 v4, s%d, %d" % (64+2*i, i+1))
        a("s_cmp_ge_u32 s45, 6\ns_cselect_b32 s50, 32, 0\nv_lshlrev_b32 v2, 2, v1\ns_movk_i32 s51, 0x1ff\ns_cselect_b32 exec_lo, 0xfe, s51\ns_mov_b32 exec_hi, 0")
        a("buffer_atomic_umax v4, v2, s[28:31], s50 offen")
    a("s_waitcnt vmcnt(0)")
    if "pace" in a.opt:
        k = a.opt["pace"]; lp = a.label("pace")
        a("s_cmp_eq_u32 s%d, 0\ns_cselect_b32 s50, s64, s%d\ns_add_u32 s50, s50, 4000\n%s:\ns_sleep 2\ns_memrealtime s[82:83]\ns_waitcnt lgkmcnt(0)\ns_sub_u32 s51, s82, s50\ns_cmp_lt_i32 s51, 0\ns_cbranch_scc1 %s" % (64+2*k, 64+2*k, lp, lp))
    a("%s:" % l)

def t_coords(a):
    a("s_cmp_ge_u32 s45, 3\ns_cselect_b32 s50, 1, 0\ns_mul_i32 s51, s50, 3\ns_sub_u32 s51, s45, s51")
    a("s_lshl_b32 s47, s50, 2\ns_lshr_b32 s52, s46, 3\ns_add_u32 s47, s47, s52")
    a("s_lshl_b32 s48, s51, 3\ns_and_b32 s52, s46, 7\ns_add_u32 s48, s48, s52")

DL = 131072
def stage_d_loads(a):
    srd(a, 28, 6, 640*1536*4); srd(a, 36, 8, 5*1536*2); srd(a, 40, 10, 5*1536*2)
    a("v_lshrrev_b32 v2, 4, v1\ns_mul_i32 s50, s44, 20\nv_add_u32 v2, s50, v2\nv_and_b32 v3, 15, v1")
    a("s_mul_i32 s51, s47, %d\ns_lshl_b32 s52, s48, 8\ns_add_u32 s51, s51, s52" % (80*6144))
    a("s_mul_i32 s52, s44, 5120\ns_add_u32 s52, s52, %d\ns_movk_i32 s53, 6144" % DL)
    for p in range(5):
        a("v_add_u32 v4, %d, v2\nv_and_b32 v5, 15, v4\nv_xor_b32 v5, v5, v3\nv_mul_u32_u24 v4, s53, v4\nv_lshl_add_u32 v4, v5, 4, v4" % (4*p))
        a("s_add_u32 m0, s52, %d\ns_nop 0" % (1024*p))
        a.vmi("buffer_load_dwordx4 v4, s[28:31], s51 offen lds", "qw")
    a("v_lshrrev_b32 v2, 4, v1\nv_lshlrev_b32 v2, 4, v2")
    a("s_and_b32 s52, s44, 1\ns_lshl_b32 s52, s52, 6\ns_lshl_b32 s53, s48, 7\ns_add_u32 s52, s52, s53")
    for u in range(3):
        a("s_lshr_b32 s53, s44, 1\ns_add_u32 s53, s53, %d\ns_min_u32 s53, s53, 4\ns_mul_i32 s54, s47, 5\ns_add_u32 s53, s53, s54\ns_lshr_b32 s53, s53, 3" % (2*u))
        a("s_mul_i32 s53, s53, 3072\ns_add_u32 s53, s53, s52")
        a.vmi("buffer_load_dwordx4 v[%d:%d], v2, s[36:39], s53 offen" % (128+8*u, 131+8*u), "sz")
        a.vmi("buffer_load_dwordx4 v[%d:%d], v2, s[40:43], s53 offen" % (132+8*u, 135+8*u), "sz")

def stage_d_compute(a, sc):
    a.wvm("qw", "sz"); a("s_barrier")
    a("v_and_b32 v2, 15, v1\nv_lshrrev_b32 v3, 4, v1\nv_lshlrev_b32 v3, 1, v3\ns_and_b32 s50, s44, 1\ns_lshl_b32 s50, s50, 3\nv_add_u32 v3, s50, v3")
    a("v_xor_b32 v4, v3, v2\nv_xor_b32 v5, 1, v4\ns_lshr_b32 s50, s44, 1\ns_lshl_b32 s50, s50, 12\ns_add_u32 s50, s50, %d" % DL)
    a("v_lshlrev_b32 v2, 8, v2\nv_add_u32 v2, s50, v2\nv_lshl_add_u32 v4, v4, 4, v2\nv_lshl_add_u32 v5, v5, 4, v2")
    a("s_mul_i32 s50, s47, 5\ns_lshr_b32 s51, s44, 1\ns_add_u32 s50, s50, s51\ns_mul_i32 s50, s50, 48\ns_lshl_b32 s51, s48, 1\ns_add_u32 s50, s50, s51")
    a("s_and_b32 s51, s44, 1\ns_add_u32 s50, s50, s51\ns_lshl_b32 s50, s50, 10\ns_add_u32 s50, s50, %d" % WQ)
    skip = a.label("dskip")
    for u in range(3):
        if u == 2: a("s_cmp_ge_u32 s44, 2\ns_cbranch_scc1 %s" % skip)
        q = 16 + 8*u
        a.lgi("ds_read_b128 v[%d:%d], v4 offset:%d" % (q, q+3, 8192*u), "dq%d" % u)
        a.lgi("ds_read_b128 v[%d:%d], v5 offset:%d" % (q+4, q+7, 8192*u), "dq%d" % u)
        s0, z0, t = 128+8*u, 132+8*u, 48
        for k in range(4):
            a("v_lshlrev_b32 v%d, 16, v%d\nv_and_b32 v%d, 0xffff0000, v%d" % (t+2*k, s0+k, t+2*k+1, s0+k))
            a("v_lshlrev_b32 v%d, 16, v%d\nv_and_b32 v%d, 0xffff0000, v%d" % (t+8+2*k, z0+k, t+8+2*k+1, z0+k))
        a.wlg("dq%d" % u)
        for k in range(8): a("v_cvt_f32_i32 v%d, v%d" % (q+k, q+k))
        for k in range(8): a("v_sub_f32 v%d, v%d, v%d" % (q+k, q+k, t+8+k))
        for k in range(8): a("v_mul_f32 v%d, v%d, v%d" % (q+k, q+k, t+k))
        o = 64 + 4*u
        for k in range(4): a("v_cvt_pk_bf16_f32 v%d, v%d, v%d" % (o+k, q+2*k, q+2*k+1))
        a("s_add_u32 s51, s50, %d" % (u*2*48*1024))
        a("buffer_store_dwordx4 v[%d:%d], v10, s[24:27], s51 offen%s" % (o, o+3, sc))
        if u < 2: a.vm.append("dst")
    a("%s:" % skip)

RV, NA = 8, 4
def t_setup(a):
    srd(a, 32, 14, 1536*1536*2)
    a("v_lshrrev_b32 v6, 3, v1\nv_and_b32 v7, 7, v1\nv_lshrrev_b32 v8, 2, v1\nv_and_b32 v8, 4, v8\nv_xor_b32 v7, v7, v8")
    a("s_movk_i32 s50, 3072\nv_mul_u32_u24 v6, s50, v6\nv_lshl_add_u32 v2, v7, 4, v6")
    for p in range(1, 4): a("v_add_u32 v%d, %d, v2" % (2+p, p*(24576-1024)))
    a("v_lshrrev_b32 v11, 4, v1\nv_lshlrev_b32 v11, 3, v11\nv_bfe_u32 v12, v1, 2, 2\nv_add_u32 v11, v11, v12\nv_lshlrev_b32 v11, 7, v11")
    a("v_and_b32 v12, 3, v1\nv_lshrrev_b32 v13, 1, v1\nv_and_b32 v13, 4, v13\nv_xor_b32 v12, v12, v13\nv_lshl_add_u32 v11, v12, 4, v11")
    a("s_mul_i32 s53, s44, %d" % (RV*4096))
    for b in range(4):
        a("s_add_u32 s50, s44, %d\ns_and_b32 s51, s50, 1\ns_lshl_b32 s51, s51, 3\ns_add_u32 s51, s51, s53\ns_and_b32 s50, s50, 2\ns_lshl_b32 s50, s50, 5" % b)
        a("v_xor_b32 v%d, s50, v11\nv_add_u32 v%d, s51, v%d" % (6+b, 6+b, 6+b))
    a("s_mul_i32 s55, s44, %d\ns_lshl_b32 s50, s48, 7\ns_add_u32 s55, s55, s50" % (12*32*3072))
    a("s_mul_i32 s56, s47, %d\ns_mul_i32 s50, s44, %d\ns_add_u32 s56, s56, s50\ns_add_u32 s56, s56, %d" % (5*48*1024, 12*1024, WQ))
    a("s_mov_b32 s57, s53")
def t_vload1(a, s, p):
    a("s_add_u32 m0, s57, %d\ns_add_u32 s50, s55, %d" % ((s % RV)*4096, s*32*3072))
    a.vmi("buffer_load_dwordx4 v%d, s[32:35], s50 offen offset:%d lds" % (2+p, 1024*p), "V%d" % s)
def t_vload(a, s):
    a("s_add_u32 m0, s57, %d\ns_add_u32 s50, s55, %d" % ((s % RV)*4096, s*32*3072))
    for p in range(4):
        a.vmi("buffer_load_dwordx4 v%d, s[32:35], s50 offen offset:%d lds" % (2+p, 1024*p), "V%d" % s)
def t_aload1(a, s, b, sc):
    NA = a.opt.get("na", 4)
    r = (s % NA)*20 + 4*b
    a("s_add_u32 s50, s56, %d" % (b*48*1024 + s*1024))
    a.vmi("buffer_load_dwordx4 a[%d:%d], v10, s[24:27], s50 offen%s" % (r, r+3, sc), "A%d" % s)
def t_bread(a, s, b, t):
    r = 96 + (s & 1)*16 + 4*b + 2*t
    a.lgi("ds_read_b64_tr_b16 v[%d:%d], v%d offset:%d" % (r, r+1, 6+b, (s % RV)*4096 + t*512), "B%d" % s)
def stage_t_main(a, ldsc, stsc, vdone, pre_store=None):
    ACC = 16
    NA = a.opt.get("na", 4)
    for s in range(RV):
        if s >= vdone: t_vload(a, s)
        if s < NA:
            for b in range(5): t_aload1(a, s, b, ldsc)
    a.wvm("V0")
    for b in range(4):
        for t in range(2): t_bread(a, 0, b, t)
    vq = [(s, p) for s in range(RV, 12) for p in range(4)]
    for s in range(12):
        a.wvm("A%d" % s, "V%d" % (s+1)); a.wlg("B%d" % s)
        if s == 0: a.stamp(3)
        n = 0
        for db in range(5):
            for b in range(4):
                c = ACC + (b*5+db)*4; ar = (s % NA)*20 + 4*db; br = 96 + (s & 1)*16 + 4*b
                a("v_mfma_f32_16x16x32_bf16 v[%d:%d], a[%d:%d], v[%d:%d], %s" % (c, c+3, ar, ar+3, br, br+3, "0" if s == 0 else "v[%d:%d]" % (c, c+3)))
                if s+1 < 12 and n < 16 and (n & 1) == 0: t_bread(a, s+1, n >> 2, (n >> 1) & 1)
                if b == 3 and s + NA < 12: t_aload1(a, s+NA, db, ldsc)
                if b == 1 and db in (1, 3) and vq and vq[0][0] - RV <= s: t_vload1(a, *vq.pop(0))
                n += 1
    assert not vq
    a.stamp(4)
    a("s_barrier\ns_nop 7")
    for b in range(1, 4):
        a("s_add_u32 s50, s44, %d\ns_and_b32 s50, s50, 3\ns_mul_i32 s50, s50, %d\ns_add_u32 s50, s50, %d\nv_add_u32 v2, s50, v10" % (b, 15360, (b-1)*5120))
        for db in range(5):
            c = ACC + (b*5+db)*4
            a.lgi("ds_write_b128 v2, v[%d:%d] offset:%d" % (c, c+3, db*1024), "rw")
    a("s_mul_i32 s50, s44, 15360\nv_add_u32 v2, s50, v10")
    a.wall(vm=False); a("s_barrier")
    for db in range(5):
        for b in range(3):
            r = 36 + (db*3+b)*4
            a.lgi("ds_read_b128 v[%d:%d], v2 offset:%d" % (r, r+3, b*5120 + db*1024), "rr%d" % db)
    if pre_store: pre_store()
    a("s_lshl_b32 s50, s48, 2\ns_add_u32 s50, s50, s44\ns_mul_i32 s50, s50, 20\ns_lshr_b32 s51, s47, 1\ns_mul_i32 s51, s51, 5\ns_add_u32 s50, s50, s51")
    a("s_lshl_b32 s50, s50, 10\ns_add_u32 s50, s50, %d\ns_and_b32 s51, s47, 1\ns_lshl_b32 s52, s51, 11\ns_add_u32 s52, s52, s50" % TF)
    a("s_lshl_b32 s51, s51, 9\ns_add_u32 s51, s51, s50\ns_add_u32 s51, s51, 4096\nv_lshlrev_b32 v3, 3, v1")
    for db in range(5):
        a.wlg("rr%d" % db)
        c = ACC + db*4; r = 36 + db*12
        for k in range(0, 4, 2):
            a("v_pk_add_f32 v[%d:%d], v[%d:%d], v[%d:%d]" % (c+k, c+k+1, c+k, c+k+1, r+k, r+k+1))
            a("v_pk_add_f32 v[%d:%d], v[%d:%d], v[%d:%d]" % (r+4+k, r+5+k, r+4+k, r+5+k, r+8+k, r+9+k))
        for k in range(0, 4, 2):
            a("v_pk_add_f32 v[%d:%d], v[%d:%d], v[%d:%d]" % (c+k, c+k+1, c+k, c+k+1, r+4+k, r+5+k))
        o = 96 + 2*db
        a("v_cvt_pk_bf16_f32 v%d, v%d, v%d\nv_cvt_pk_bf16_f32 v%d, v%d, v%d" % (o, c, c+1, o+1, c+2, c+3))
        if db in (1, 3): a.vmi("buffer_store_dwordx4 v[%d:%d], v10, s[24:27], s52 offen offset:%d%s" % (o-2, o+1, (db >> 1)*1024, stsc), "tst")
        if db == 4: a.vmi("buffer_store_dwordx2 v[%d:%d], v3, s[24:27], s51 offen%s" % (o, o+1, stsc), "tst")

XS = 36864
def stage_x(a, stsc, pre_store=None):
    srd(a, 28, 4, 2048*640*2); srd(a, 32, 12, 640*640*2)
    a("s_sub_u32 s47, s45, 6\ns_lshl_b32 s47, s47, 3\ns_lshr_b32 s50, s46, 2\ns_add_u32 s47, s47, s50\ns_and_b32 s48, s46, 3")
    a("s_movk_i32 s53, 1280\nv_lshrrev_b32 v11, 3, v1\ns_lshl_b32 s50, s44, 5\nv_add_u32 v11, s50, v11\nv_and_b32 v12, 7, v1\nv_lshrrev_b32 v13, 4, v1")
    for p in range(4):
        a("v_add_u32 v14, %d, v13\nv_and_b32 v14, 7, v14\nv_xor_b32 v14, v14, v12\nv_add_u32 v15, %d, v11\nv_mul_u32_u24 v15, s53, v15" % (4*p, 8*p))
        a("v_lshl_add_u32 v%d, v14, 4, v15" % (2+p))
        if p: a("v_subrev_u32 v%d, %d, v%d" % (2+p, 1024*p, 2+p))
    a("s_movk_i32 s54, 3277\ns_lshl_b32 s50, s44, 4")
    UR = [6, 7, 8, 9, 11]
    for p in range(5):
        a("v_add_u32 v12, %d, v1\nv_mul_u32_u24 v13, s54, v12\nv_lshrrev_b32 v13, 16, v13\nv_mul_u32_u24 v14, 20, v13\nv_sub_u32 v12, v12, v14" % (64*p))
        a("v_lshrrev_b32 v14, 2, v13\nv_and_b32 v14, 2, v14\nv_xor_b32 v12, v12, v14\nv_add_u32 v13, s50, v13\nv_mul_u32_u24 v13, s53, v13\nv_lshl_add_u32 v%d, v12, 4, v13" % UR[p])
        if 0 < p < 4: a("v_subrev_u32 v%d, %d, v%d" % (UR[p], 1024*p, UR[p]))
    a("s_mul_i32 s55, s47, %d\ns_mul_i32 s56, s48, 320\ns_lshl_b32 s57, s44, 12\ns_mul_i32 s58, s44, 5120\ns_add_u32 s58, s58, 16384" % (128*1280))
    def dma1(st, i):
        sl = (st % 4)*XS
        if i < 4:
            a("s_add_u32 m0, s57, %d\ns_add_u32 s50, s55, %d" % (sl, st*128))
            a.vmi("buffer_load_dwordx4 v%d, s[28:31], s50 offen offset:%d lds" % (2+i, 1024*i), "S%d" % st)
        else:
            p = i - 4
            a("s_add_u32 m0, s58, %d\ns_add_u32 s50, s56, %d" % (sl + (4096 if p == 4 else 0), st*64*1280))
            a.vmi("buffer_load_dwordx4 v%d, s[32:35], s50 offen offset:%d lds" % (UR[p], 1024*(p & 3) if p < 4 else 0), "S%d" % st)
    def dma(st):
        for i in range(9): dma1(st, i)
    XP = a.opt.get('xpre', 2)
    for st in range(XP): dma(st)
    dq = [(st, i) for st in range(XP, 10) for i in range(9)]
    free = 4
    a("v_and_b32 v12, 15, v1\nv_lshrrev_b32 v13, 4, v1\nv_lshrrev_b32 v14, 1, v12\nv_xor_b32 v14, v14, v13\ns_lshr_b32 s50, s44, 1\ns_lshl_b32 s50, s50, 13")
    a("v_lshlrev_b32 v12, 7, v12\nv_lshl_add_u32 v12, v14, 4, v12\nv_add_u32 v176, s50, v12\nv_xor_b32 v177, 64, v176")
    a("v_add_u32 v178, %d, v176\nv_add_u32 v179, %d, v177" % (2*XS, 2*XS))
    a("v_lshlrev_b32 v12, 3, v13\nv_bfe_u32 v14, v1, 2, 2\nv_add_u32 v12, v12, v14\ns_movk_i32 s50, 320\nv_mul_u32_u24 v12, s50, v12\nv_and_b32 v14, 3, v1\nv_lshl_add_u32 v12, v14, 3, v12")
    a("s_and_b32 s50, s44, 1\ns_mul_i32 s51, s50, 160\ns_add_u32 s51, s51, 16384\nv_add_u32 v12, s51, v12\nv_and_b32 v13, 1, v13\nv_lshlrev_b32 v13, 5, v13")
    a("s_lshl_b32 s50, s50, 1\ns_sub_u32 s50, 1, s50\nv_mul_lo_u32 v13, v13, s50\nv_add_u32 v180, v12, v13\nv_sub_u32 v181, v12, v13")
    a("v_add_u32 v182, %d, v180\nv_add_u32 v183, %d, v181" % (2*XS, 2*XS))
    ACC = 16; FB = 96
    def reads(u):
        st, k = u >> 1, u & 1; sl = st % 4; hi = (sl >> 1)*2; lo = (sl & 1)*XS; fb = FB + 36*(u & 1)
        R = []
        for i in range(5):
            if i < 4: R.append("ds_read_b128 v[%d:%d], v%d offset:%d" % (fb+4*i, fb+4*i+3, 176+hi+k, lo + i*2048))
            for t in range(2):
                r = fb + 16 + 4*i + 2*t
                R.append("ds_read_b64_tr_b16 v[%d:%d], v%d offset:%d" % (r, r+1, 180+hi+(i & 1), lo + (32*k+4*t)*320 + 32*i))
        return R
    a.wvm("S0"); a("s_barrier")
    a.stamp(1)
    for r in reads(0): a.lgi(r, "F0")
    for u in range(20):
        a.wlg("F%d" % u)
        R = reads(u+1) if u < 19 else []
        fb = FB + 36*(u & 1); n = 0
        for eb in range(5):
            for mb in range(4):
                c = ACC + (eb*4+mb)*4; ar = fb + 16 + 4*eb; br = fb + 4*mb
                a("v_mfma_f32_16x16x32_bf16 v[%d:%d], v[%d:%d], v[%d:%d], %s" % (c, c+3, ar, ar+3, br, br+3, "0" if u == 0 else "v[%d:%d]" % (c, c+3)))
                if n == 1 and (u & 1) and u < 19:
                    st = u >> 1
                    a.wvm("S%d" % (st+1)); a("s_barrier"); free = st + 5
                if n >= 1 and R: a.lgi(R.pop(0), "F%d" % (u+1))
                if n % a.opt.get('xev', 4) == a.opt.get('xev', 4) - 1 and dq and dq[0][0] < free: dma1(*dq.pop(0))
                n += 1
        assert not R
    a.stamp(4)
    assert not dq
    if pre_store: pre_store()
    a("s_lshl_b32 s50, s47, 3\ns_lshr_b32 s51, s44, 1\ns_lshl_b32 s51, s51, 2\ns_add_u32 s50, s50, s51\ns_mul_i32 s50, s50, 20\ns_mul_i32 s51, s48, 5\ns_add_u32 s50, s50, s51")
    a("s_lshl_b32 s50, s50, 10\ns_add_u32 s50, s50, %d\ns_and_b32 s51, s44, 1\ns_lshl_b32 s52, s51, 11\ns_add_u32 s52, s52, s50" % XF)
    a("s_lshl_b32 s51, s51, 9\ns_add_u32 s51, s51, s50\ns_add_u32 s51, s51, 4096\nv_lshlrev_b32 v3, 3, v1\ns_nop 3")
    for mb in range(4):
        o = 96 + 12*mb
        for eb in range(5):
            c = ACC + (eb*4+mb)*4
            a("v_cvt_pk_bf16_f32 v%d, v%d, v%d\nv_cvt_pk_bf16_f32 v%d, v%d, v%d" % (o+2*eb, c, c+1, o+2*eb+1, c+2, c+3))
            if eb in (1, 3): a.vmi("buffer_store_dwordx4 v[%d:%d], v10, s[24:27], s52 offen offset:%d%s" % (o+2*eb-2, o+2*eb+1, (eb >> 1)*1024, stsc), "xst")
            if eb == 4: a.vmi("buffer_store_dwordx2 v[%d:%d], v3, s[24:27], s51 offen%s" % (o+8, o+9, stsc), "xst")
        if mb < 3: a("s_add_u32 s52, s52, 20480\ns_add_u32 s51, s51, 20480")

def y_coords(a):
    a("s_lshr_b32 s81, s45, 1\ns_lshl_b32 s81, s81, 2\ns_lshr_b32 s50, s46, 3\ns_add_u32 s81, s81, s50")
    a("s_and_b32 s49, s45, 1\ns_lshl_b32 s49, s49, 3\ns_and_b32 s50, s46, 7\ns_add_u32 s49, s49, s50")
def y_setup(a):
    a("s_mov_b32 s47, s81\ns_mov_b32 s48, s49")
    srd(a, 28, 16, 2048*1536*2)
    a("v_lshlrev_b32 v11, 3, v1\nv_add_u32 v12, 4096, v11\nv_add_u32 v13, 61440, v10\nv_add_u32 v14, 61440, v11")
    a("s_lshl_b32 s55, s47, 3\ns_lshl_b32 s50, s44, 1\ns_add_u32 s55, s55, s50\ns_mul_i32 s55, s55, 20480\ns_add_u32 s55, s55, %d" % XF)
    a("s_mul_i32 s56, s48, 122880\ns_add_u32 s56, s56, %d" % TF)
    for i in range(3):
        a("s_mul_i32 s50, s44, 3\ns_add_u32 s50, s50, %d\ns_and_b32 s51, s50, 1\ns_lshr_b32 s50, s50, 1\ns_mul_i32 s50, s50, 20480\ns_lshl_b32 s51, s51, 10\ns_add_u32 s%d, s50, s51" % (i, 57+i))
def y_xload(a, ks, sc):
    G, r = divmod(ks, 5)
    for mb in range(2):
        d = (ks*2+mb)*4
        a("s_add_u32 s50, s55, %d" % (mb*20480 + G*5120))
        if r < 4: a.vmi("buffer_load_dwordx4 a[%d:%d], v10, s[24:27], s50 offen offset:%d%s" % (d, d+3, r*1024, sc), "X%d" % ks)
        else:
            for h in range(2): a.vmi("buffer_load_dwordx2 a[%d:%d], v12, s[24:27], s50 offen offset:%d%s" % (d+2*h, d+2*h+1, h*512, sc), "X%d" % ks)
def y_tload1(a, st, i, sc):
    a("s_add_u32 m0, s%d, %d\ns_add_u32 s50, s56, m0" % (57+i, st*2048))
    a.vmi("buffer_load_dwordx4 v10, s[24:27], s50 offen%s lds" % sc, "T%d" % st)
def stage_y_main(a, sc, xfirst):
    ACC = 16; FB = 64
    q = []
    for st in range(10):
        q += [lambda st=st, i=i: y_tload1(a, st, i, sc) for i in range(3)]
        if not xfirst: q += [lambda k=2*st: y_xload(a, k, sc), lambda k=2*st+1: y_xload(a, k, sc)]
    for i in range(a.opt.get("ypre", 2)*(3 if xfirst else 5)): q.pop(0)()
    ev = a.opt.get("yev", 4)
    def reads(ks):
        R = []; fb = FB + 24*(ks & 1)
        for nb in range(6):
            off = (nb % 3)*20480 + ks*1024; r = fb + 4*nb
            if ks % 5 < 4: R.append(["ds_read_b128 v[%d:%d], v%d offset:%d" % (r, r+3, 10 if nb < 3 else 13, off)])
            else: R.append(["ds_read_b64 v[%d:%d], v%d offset:%d" % (r+2*h, r+2*h+1, 11 if nb < 3 else 14, off+512*h) for h in range(2)])
        return R
    a.wvm("T0"); a("s_barrier")
    a.stamp(5)
    for rr in reads(0):
        for r in rr: a.lgi(r, "F0")
    for ks in range(20):
        a.wvm("X%d" % ks); a.wlg("F%d" % ks)
        R = reads(ks+1) if ks < 19 else []
        fb = FB + 24*(ks & 1); n = 0
        for nb in range(6):
            for mb in range(2):
                c = ACC + (nb*2+mb)*4; ar = fb + 4*nb; br = (ks*2+mb)*4
                a("v_mfma_f32_16x16x32_bf16 v[%d:%d], v[%d:%d], a[%d:%d], %s" % (c, c+3, ar, ar+3, br, br+3, "0" if ks == 0 else "v[%d:%d]" % (c, c+3)))
                if n == 1 and (ks & 1) and ks < 19:
                    a.wvm("T%d" % ((ks >> 1)+1)); a("s_barrier")
                if n >= 1 and R:
                    for r in R.pop(0): a.lgi(r, "F%d" % (ks+1))
                if n % ev == ev - 1 and q: q.pop(0)()
                n += 1
    assert not q
    a.stamp(6)
    a("v_and_b32 v2, 15, v1\nv_lshrrev_b32 v3, 4, v1\ns_movk_i32 s50, 3072\nv_mul_u32_u24 v2, s50, v2\nv_lshl_add_u32 v2, v3, 4, v2")
    a("s_lshl_b32 s50, s47, 2\ns_add_u32 s50, s50, s44\ns_mul_i32 s50, s50, %d\ns_mul_i32 s51, s48, 192\ns_add_u32 s50, s50, s51\ns_add_u32 s51, s50, %d\ns_nop 1" % (32*3072, 16*3072))
    for P in range(3):
        for mb in range(2):
            o = FB + (P*2+mb)*4
            for sub in range(2):
                c = ACC + ((2*P+sub)*2+mb)*4
                a("v_cvt_pk_bf16_f32 v%d, v%d, v%d\nv_cvt_pk_bf16_f32 v%d, v%d, v%d" % (o+2*sub, c, c+1, o+2*sub+1, c+2, c+3))
            a.vmi("buffer_store_dwordx4 v[%d:%d], v2, s[28:31], s%d offen offset:%d%s" % (o, o+3, 50+mb, 64*P, a.opt.get("ysc", "")), "yst")

def kd(name, vg, acc):
    return """.section .rodata,"a"
.p2align 6
.amdhsa_kernel %s
  .amdhsa_next_free_vgpr %d
  .amdhsa_next_free_sgpr 96
  .amdhsa_accum_offset %d
  .amdhsa_group_segment_fixed_size 0
  .amdhsa_kernarg_size 72
  .amdhsa_user_sgpr_count 2
  .amdhsa_user_sgpr_kernarg_segment_ptr 1
  .amdhsa_system_sgpr_workgroup_id_x 1
.end_amdhsa_kernel
""" % (name, vg, acc)
def head(name): return ".text\n.globl %s\n.p2align 8\n.type %s,@function\n%s:\n" % (name, name, name)
HDR = open("standalone__weight_only_int_quip__prompt.s.ref").read().split("; Override")[0] if len(sys.argv) > 0 else ""

def gen_multi(opt):
    out = HDR
    out += "; @launch kernel=qd_kernel grid=(256,1,1) block=(256,1,1) lds=151552\n"
    out += "; @launch kernel=qtx_kernel grid=(256,1,1) block=(256,1,1) lds=147456\n"
    out += "; @launch kernel=qy_kernel grid=(256,1,1) block=(256,1,1) lds=122880\n"
    out += '.amdgcn_target "amdgcn-amd-amdhsa--gfx950"\n'
    a = Asm(opt); prologue(a, 256, "L_d_end"); a("s_cmp_ge_u32 s45, 6\ns_cbranch_scc1 L_d_end")
    t_coords(a); stage_d_loads(a); stage_d_compute(a, ""); a.wall(); write_stamps(a, 0); a("L_d_end:\ns_endpgm")
    out += head("qd_kernel") + a.text()
    a = Asm(opt); a.uid = 100; prologue(a, 256, "L_tx_end"); a("s_cmp_ge_u32 s45, 6\ns_cbranch_scc1 L_x")
    t_coords(a); t_setup(a)
    stage_t_main(a, "", "", 0); a("s_branch L_tx_fin\nL_x:"); a.vm = []; a.lg = []
    stage_x(a, ""); a("L_tx_fin:"); a.wall(); write_stamps(a, 1); a("L_tx_end:\ns_endpgm")
    out += head("qtx_kernel") + a.text()
    a = Asm(opt); a.uid = 200; prologue(a, 256, "L_y_end"); y_coords(a); y_setup(a); stage_y_main(a, "", False); a.wall(); write_stamps(a, 2); a("L_y_end:\ns_endpgm")
    out += head("qy_kernel") + a.text()
    out += kd("qd_kernel", 160, 160) + kd("qtx_kernel", 192+80, 192) + kd("qy_kernel", 128+160, 128)
    return out

FD, FT, FX = FL + 0x1000, FL + 0x2000, FL + 0x3000
SPIN = 20000
def poll_issue(a, r, n, soff):
    a("v_min_u32 v%d, %d, v1\nv_lshlrev_b32 v%d, 3, v%d" % (r+2, n-1, r+2, r+2))
    a.vmi("buffer_load_dwordx2 v[%d:%d], v%d, s[24:27], %s offen sc1" % (r, r+1, r+2, soff), "poll%d" % r)
def poll_check(a, r, soff):
    a.wvm("poll%d" % r)
    lp, ok = a.label("spin"), a.label("ok")
    a("s_movk_i32 s63, %d\n%s:" % (SPIN, lp))
    a("v_cmp_ne_u32 vcc, s80, v%d\nv_cmp_ne_u32 s[84:85], s62, v%d\ns_or_b64 vcc, vcc, s[84:85]\ns_cbranch_vccz %s" % (r, r+1, ok))
    a("s_sub_u32 s63, s63, 1\ns_cmp_eq_u32 s63, 0\ns_cbranch_scc1 %s" % ok)
    if a.opt.get("sleep"): a("s_sleep %d" % a.opt["sleep"])
    a("buffer_load_dwordx2 v[%d:%d], v%d, s[24:27], %s offen sc1\ns_waitcnt vmcnt(0)\ns_branch %s\n%s:" % (r, r+1, r+2, soff, lp, ok))
def flag_store(a, soff):
    l = a.label("nf")
    a("s_barrier\ns_cmp_lg_u32 s44, 0\ns_cbranch_scc1 %s" % l)
    a("v_mov_b32 v186, s80\nv_mov_b32 v187, s62\nv_mov_b32 v188, 0\ns_mov_b64 s[84:85], exec\ns_mov_b64 exec, 1")
    a("buffer_store_dwordx2 v[186:187], v188, s[24:27], %s offen sc1\ns_mov_b64 exec, s[84:85]\n%s:" % (soff, l))

def gen_persist(opt):
    out = HDR + "; @launch grid=(256,1,1) block=(256,1,1) lds=151552\n"
    out += '.amdgcn_target "amdgcn-amd-amdhsa--gfx950"\n'
    a = Asm(opt); sc = " sc1"
    prologue(a, 256, "L_end")
    a("s_add_u32 s22, s20, 0x%x\ns_addc_u32 s23, s21, 0\ns_load_dword s80, s[22:23], 0" % FL)
    y_coords(a)
    a("s_lshl_b32 s60, s81, 5\ns_add_u32 s60, s60, 0x%x" % FX)
    a("s_mul_i32 s61, s49, 3\ns_lshr_b32 s61, s61, 1\ns_lshl_b32 s61, s61, 6\ns_add_u32 s61, s61, 0x%x" % FT)
    nonce = "s_waitcnt lgkmcnt(0)\ns_mul_i32 s80, s80, 0x9E3779B1\ns_add_u32 s80, s80, 0x7F4A7C15\ns_xor_b32 s62, s80, 0x5bd1e995\ns_mul_i32 s62, s62, 0x85EBCA6B"
    a("s_cmp_ge_u32 s45, 6\ns_cbranch_scc1 L_x")
    t_coords(a); stage_d_loads(a); t_setup(a)
    a("v_mov_b32 v160, v2\nv_mov_b32 v161, v3\nv_mov_b32 v162, v4\nv_mov_b32 v163, v5")
    vp = opt.get("vpre", 2)
    for st in range(vp): t_vload(a, st)
    a(nonce)
    stage_d_compute(a, sc)
    a("v_mov_b32 v2, v160\nv_mov_b32 v3, v161\nv_mov_b32 v4, v162\nv_mov_b32 v5, v163")
    a.stamp(1)
    vm = opt.get("vmid", 5)
    for st in range(vp, vm): t_vload(a, st)
    a.wvm("dst")
    a("s_lshl_b32 s59, s47, 8\ns_add_u32 s59, s59, 0x%x\ns_lshl_b32 s50, s48, 3\ns_add_u32 s58, s59, s50\ns_mul_i32 s50, s44, 48\ns_add_u32 s59, s59, s50" % FD)
    flag_store(a, "s58")
    vl = opt.get("vlate", 6)
    for st in range(vm, vl): t_vload(a, st)
    poll_issue(a, 180, 6, "s59")
    for st in range(vl, RV): t_vload(a, st)
    poll_check(a, 180, "s59")
    a.stamp(2)
    stage_t_main(a, sc, sc, RV, pre_store=lambda: poll_issue(a, 180, 4, "s60"))
    a("s_lshl_b32 s58, s48, 6\ns_lshl_b32 s50, s47, 3\ns_add_u32 s58, s58, s50\ns_add_u32 s58, s58, 0x%x" % FT)
    a("s_branch L_pub\nL_x:"); a.vm = []; a.lg = []
    a(nonce)
    stage_x(a, sc, pre_store=lambda: poll_issue(a, 180, 4, "s60"))
    a("s_lshl_b32 s58, s47, 5\ns_lshl_b32 s50, s48, 3\ns_add_u32 s58, s58, s50\ns_add_u32 s58, s58, 0x%x" % FX)
    a("L_pub:"); a.wall()
    flag_store(a, "s58")
    y_setup(a)
    poll_check(a, 180, "s60")
    xl = opt.get("xlate", 14)
    for ks in range(xl): y_xload(a, ks, sc)
    poll_issue(a, 180, 16, "s61")
    for ks in range(xl, 20): y_xload(a, ks, sc)
    poll_check(a, 180, "s61")
    stage_y_main(a, sc, True)
    a("s_or_b32 s50, s2, s44\ns_cmp_lg_u32 s50, 0\ns_cbranch_scc1 L_fin")
    a("s_mov_b32 s60, 0x%x" % FX)
    poll_issue(a, 180, 64, "s60"); a.wall(); poll_check(a, 180, "s60")
    a("v_mov_b32 v186, s80\nv_mov_b32 v188, 0\ns_mov_b32 s60, 0x%x\ns_mov_b64 exec, 1\nbuffer_store_dword v186, v188, s[24:27], s60 offen sc1\ns_mov_b64 exec, -1" % FL)
    a("L_fin:"); a.wall(); write_stamps(a, 0); a("L_end:\ns_endpgm")
    out += head(KN) + a.text() + kd(KN, 192+160, 192)
    return out

if __name__ == "__main__":
    opt = {}
    mode = sys.argv[1]; outp = sys.argv[2]
    for kv in sys.argv[3:]:
        k, v = kv.split("="); opt[k] = int(v) if v.lstrip("-").isdigit() else v
    open(outp, "w").write(globals()["gen_" + mode](opt))
```

```python
import sys
KN = "standalone__weight_only_int_quip__prompt_kernel"
WQ, TF, XF, FL, ST = 0x0, 0x200000, 0x400000, 0x700000, 0x780000
WS_BYTES = 0x800000

class Asm:
    def __init__(s, opt):
        s.L = []; s.vm = []; s.lg = []; s.opt = opt; s.nst = 0; s.uid = 0
    def __call__(s, t):
        for x in t.split("\n"):
            x = x.strip()
            if x: s.L.append(x if x.endswith(":") else "    " + x)
    def vmi(s, t, tag): s(t); s.vm.append(tag)
    def lgi(s, t, tag): s(t); s.lg.append(tag)
    def _n(s, q, tags):
        idx = [i for i, t in enumerate(q) if t in tags]
        if not idx: return None
        n = len(q) - 1 - max(idx)
        del q[:max(idx) + 1]
        return n
    def wvm(s, *tags):
        n = s._n(s.vm, tags)
        if n is not None: s("s_waitcnt vmcnt(%d)" % min(n, 63))
    def wlg(s, *tags):
        n = s._n(s.lg, tags)
        if n is not None: s("s_waitcnt lgkmcnt(%d)" % min(n, 15))
    def wall(s, vm=True, lg=True):
        s("s_waitcnt" + (" vmcnt(0)" if vm else "") + (" lgkmcnt(0)" if lg else ""))
        if vm: s.vm = []
        if lg: s.lg = []
    def stamp(s, i):
        if s.opt.get("stamps"):
            s("s_memrealtime s[82:83]"); s.wall(vm=False); s("s_mov_b32 s%d, s82" % (64 + i))
    def label(s, b): s.uid += 1; return "L_%s_%d" % (b, s.uid)
    def text(s): return "\n".join(s.L) + "\n"

def srd(a, d, lo, nbytes):
    a("s_mov_b32 s%d, s%d\ns_and_b32 s%d, s%d, 0xffff\ns_mov_b32 s%d, 0x%x\ns_mov_b32 s%d, 0x20000" % (d, lo, d+1, lo+1, d+2, nbytes, d+3))

def prologue(a, nwg, end):
    a("s_cmp_ge_u32 s2, %d\ns_cbranch_scc1 %s" % (nwg, end))
    if a.opt.get("stamps"):
        for i in range(8): a("s_mov_b64 s[%d:%d], 0" % (64+2*i, 65+2*i))
    a.stamp(0)
    a("s_load_dwordx16 s[4:19], s[0:1], 0\ns_load_dwordx2 s[20:21], s[0:1], 64")
    a("v_lshrrev_b32 v2, 6, v0\nv_and_b32 v1, 63, v0\ns_and_b32 s45, s2, 7\nv_readfirstlane_b32 s44, v2\ns_lshr_b32 s46, s2, 3")
    a("v_lshlrev_b32 v10, 4, v1")
    a("s_waitcnt lgkmcnt(0)")
    srd(a, 24, 20, WS_BYTES)

def write_stamps(a, kidx):
    if not a.opt.get("stamps"): return
    a.stamp(15)
    l = a.label("nost")
    a("s_cmp_lg_u32 s44, 0\ns_cbranch_scc1 %s" % l)
    a("s_lshl_b32 s50, s2, 6\ns_add_u32 s50, s50, 0x%x" % (ST + kidx*0x4000))
    a("v_mov_b32 v2, 0")
    for i in range(4):
        for k in range(4): a("v_mov_b32 v%d, s%d" % (4+k, 64+4*i+k))
        a("buffer_store_dwordx4 v[4:7], v2, s[24:27], s50 offen offset:%d\ns_nop 1" % (16*i))
    a("s_waitcnt vmcnt(0)")
    if "pace" in a.opt:
        k = a.opt["pace"]; lp = a.label("pace")
        a("s_cmp_eq_u32 s%d, 0\ns_cselect_b32 s50, s64, s%d\ns_add_u32 s50, s50, 4000\n%s:\ns_sleep 2\ns_memrealtime s[82:83]\ns_waitcnt lgkmcnt(0)\ns_sub_u32 s51, s82, s50\ns_cmp_lt_i32 s51, 0\ns_cbranch_scc1 %s" % (64+k, 64+k, lp, lp))
    a("%s:" % l)

def t_coords(a):
    a("s_cmp_ge_u32 s45, 3\ns_cselect_b32 s50, 1, 0\ns_mul_i32 s51, s50, 3\ns_sub_u32 s51, s45, s51")
    a("s_lshl_b32 s47, s50, 2\ns_lshr_b32 s52, s46, 3\ns_add_u32 s47, s47, s52")
    a("s_lshl_b32 s48, s51, 3\ns_and_b32 s52, s46, 7\ns_add_u32 s48, s48, s52")

DL = 131072
def stage_d_loads(a):
    srd(a, 28, 6, 640*1536*4); srd(a, 36, 8, 5*1536*2); srd(a, 40, 10, 5*1536*2)
    a("v_lshrrev_b32 v2, 4, v1\ns_mul_i32 s50, s44, 20\nv_add_u32 v2, s50, v2\nv_and_b32 v3, 15, v1")
    a("s_mul_i32 s51, s47, %d\ns_lshl_b32 s52, s48, 8\ns_add_u32 s51, s51, s52" % (80*6144))
    a("s_mul_i32 s52, s44, 5120\ns_add_u32 s52, s52, %d\ns_movk_i32 s53, 6144" % DL)
    for p in range(5):
        a("v_add_u32 v4, %d, v2\nv_and_b32 v5, 15, v4\nv_xor_b32 v5, v5, v3\nv_mul_u32_u24 v4, s53, v4\nv_lshl_add_u32 v4, v5, 4, v4" % (4*p))
        a("s_add_u32 m0, s52, %d\ns_nop 0" % (1024*p))
        a.vmi("buffer_load_dwordx4 v4, s[28:31], s51 offen%s lds" % a.opt.get("qnt", ""), "qw")
    a("v_lshrrev_b32 v2, 4, v1\nv_lshlrev_b32 v2, 4, v2")
    a("s_and_b32 s52, s44, 1\ns_lshl_b32 s52, s52, 6\ns_lshl_b32 s53, s48, 7\ns_add_u32 s52, s52, s53")
    for u in range(3):
        a("s_lshr_b32 s53, s44, 1\ns_add_u32 s53, s53, %d\ns_min_u32 s53, s53, 4\ns_mul_i32 s54, s47, 5\ns_add_u32 s53, s53, s54\ns_lshr_b32 s53, s53, 3" % (2*u))
        a("s_mul_i32 s53, s53, 3072\ns_add_u32 s53, s53, s52")
        a.vmi("buffer_load_dwordx4 v[%d:%d], v2, s[36:39], s53 offen" % (128+8*u, 131+8*u), "sz")
        a.vmi("buffer_load_dwordx4 v[%d:%d], v2, s[40:43], s53 offen" % (132+8*u, 135+8*u), "sz")

def stage_d_compute(a, sc):
    a.wvm("qw", "sz"); a("s_barrier"); a.stamp(1)
    a("v_and_b32 v2, 15, v1\nv_lshrrev_b32 v3, 4, v1\nv_lshlrev_b32 v3, 1, v3\ns_and_b32 s50, s44, 1\ns_lshl_b32 s50, s50, 3\nv_add_u32 v3, s50, v3")
    a("v_xor_b32 v4, v3, v2\nv_xor_b32 v5, 1, v4\ns_lshr_b32 s50, s44, 1\ns_lshl_b32 s50, s50, 12\ns_add_u32 s50, s50, %d" % DL)
    a("v_lshlrev_b32 v2, 8, v2\nv_add_u32 v2, s50, v2\nv_lshl_add_u32 v4, v4, 4, v2\nv_lshl_add_u32 v5, v5, 4, v2")
    a("s_mul_i32 s50, s47, 5\ns_lshr_b32 s51, s44, 1\ns_add_u32 s50, s50, s51\ns_mul_i32 s50, s50, 48\ns_lshl_b32 s51, s48, 1\ns_add_u32 s50, s50, s51")
    a("s_and_b32 s51, s44, 1\ns_add_u32 s50, s50, s51\ns_lshl_b32 s50, s50, 10\ns_add_u32 s50, s50, %d" % WQ)
    skip = a.label("dskip")
    for u in range(3):
        if u == 2: a("s_cmp_ge_u32 s44, 2\ns_cbranch_scc1 %s" % skip)
        q = 16 + 8*u
        a.lgi("ds_read_b128 v[%d:%d], v4 offset:%d" % (q, q+3, 8192*u), "dq%d" % u)
        a.lgi("ds_read_b128 v[%d:%d], v5 offset:%d" % (q+4, q+7, 8192*u), "dq%d" % u)
        s0, z0, t = 128+8*u, 132+8*u, 48
        for k in range(4):
            a("v_lshlrev_b32 v%d, 16, v%d\nv_and_b32 v%d, 0xffff0000, v%d" % (t+2*k, s0+k, t+2*k+1, s0+k))
            a("v_lshlrev_b32 v%d, 16, v%d\nv_and_b32 v%d, 0xffff0000, v%d" % (t+8+2*k, z0+k, t+8+2*k+1, z0+k))
        a.wlg("dq%d" % u)
        for k in range(8): a("v_cvt_f32_i32 v%d, v%d" % (q+k, q+k))
        for k in range(8): a("v_sub_f32 v%d, v%d, v%d" % (q+k, q+k, t+8+k))
        for k in range(8): a("v_mul_f32 v%d, v%d, v%d" % (q+k, q+k, t+k))
        o = 64 + 4*u
        for k in range(4): a("v_cvt_pk_bf16_f32 v%d, v%d, v%d" % (o+k, q+2*k, q+2*k+1))
        a("s_add_u32 s51, s50, %d" % (u*2*48*1024))
        a("buffer_store_dwordx4 v[%d:%d], v10, s[24:27], s51 offen%s" % (o, o+3, sc))
        if u < 2: a.vm.append("dst")
    a("%s:" % skip)

RV, NA = 8, 4
def t_setup(a):
    srd(a, 32, 14, 1536*1536*2)
    a("v_lshrrev_b32 v6, 3, v1\nv_and_b32 v7, 7, v1\nv_lshrrev_b32 v8, 2, v1\nv_and_b32 v8, 4, v8\nv_xor_b32 v7, v7, v8")
    a("s_movk_i32 s50, 3072\nv_mul_u32_u24 v6, s50, v6\nv_lshl_add_u32 v2, v7, 4, v6")
    for p in range(1, 4): a("v_add_u32 v%d, %d, v2" % (2+p, p*(24576-1024)))
    a("v_lshrrev_b32 v11, 4, v1\nv_lshlrev_b32 v11, 3, v11\nv_bfe_u32 v12, v1, 2, 2\nv_add_u32 v11, v11, v12\nv_lshlrev_b32 v11, 7, v11")
    a("v_and_b32 v12, 3, v1\nv_lshrrev_b32 v13, 1, v1\nv_and_b32 v13, 4, v13\nv_xor_b32 v12, v12, v13\nv_lshl_add_u32 v11, v12, 4, v11")
    a("s_mul_i32 s53, s44, %d" % (RV*4096))
    for b in range(4):
        a("s_add_u32 s50, s44, %d\ns_and_b32 s51, s50, 1\ns_lshl_b32 s51, s51, 3\ns_add_u32 s51, s51, s53\ns_and_b32 s50, s50, 2\ns_lshl_b32 s50, s50, 5" % b)
        a("v_xor_b32 v%d, s50, v11\nv_add_u32 v%d, s51, v%d" % (6+b, 6+b, 6+b))
    a("s_mul_i32 s55, s44, %d\ns_lshl_b32 s50, s48, 7\ns_add_u32 s55, s55, s50" % (12*32*3072))
    a("s_mul_i32 s56, s47, %d\ns_mul_i32 s50, s44, %d\ns_add_u32 s56, s56, s50\ns_add_u32 s56, s56, %d" % (5*48*1024, 12*1024, WQ))
    a("s_mov_b32 s57, s53")
    if a.opt.get("rot"):
        a("s_and_b32 s50, s47, 3\ns_mul_i32 s50, s50, 3\ns_and_b32 s51, s48, 7\ns_mul_i32 s51, s51, 3\ns_lshr_b32 s51, s51, 1\ns_add_u32 s50, s50, s51")
        a("s_cmp_ge_u32 s50, 12\ns_cselect_b32 s51, 12, 0\ns_sub_u32 s50, s50, s51")
    else: a("s_mov_b32 s50, 0")
    a("s_mul_i32 s86, s50, 98304\ns_add_u32 s86, s86, s55\ns_add_u32 s87, s55, %d\ns_lshl_b32 s88, s50, 10\ns_add_u32 s88, s88, s56\ns_add_u32 s90, s56, 12288" % (12*98304))
def t_vload1(a, s, p, setm0=True):
    if p == 0 and s > 0: a("s_add_u32 s86, s86, 98304\ns_cmp_eq_u32 s86, s87\ns_cselect_b32 s86, s55, s86")
    if setm0: a("s_add_u32 m0, s57, %d\ns_nop 0" % ((s % RV)*4096))
    a.vmi("buffer_load_dwordx4 v%d, s[32:35], s86 offen offset:%d%s lds" % (2+p, 1024*p, a.opt.get("vnt", "")), "V%d" % s)
def t_vload(a, s):
    for p in range(4): t_vload1(a, s, p, p == 0)
def t_aload1(a, s, b, sc):
    NA = a.opt.get("na", 4)
    r = (s % NA)*20 + 4*b
    if b == 0 and s > 0: a("s_add_u32 s88, s88, 1024\ns_cmp_eq_u32 s88, s90\ns_cselect_b32 s88, s56, s88")
    if b: a("s_add_u32 s50, s88, %d" % (b*48*1024))
    a.vmi("buffer_load_dwordx4 a[%d:%d], v10, s[24:27], %s offen%s" % (r, r+3, "s50" if b else "s88", sc), "A%d" % s)
def t_bread(a, s, b, t):
    r = 96 + (s & 1)*16 + 4*b + 2*t
    a.lgi("ds_read_b64_tr_b16 v[%d:%d], v%d offset:%d" % (r, r+1, 6+b, (s % RV)*4096 + t*512), "B%d" % s)
def stage_t_main(a, ldsc, stsc, vdone, pre_store=None):
    ACC = 16
    NA = a.opt.get("na", 4)
    for s in range(RV):
        if s >= vdone: t_vload(a, s)
        if s < NA:
            for b in range(5): t_aload1(a, s, b, ldsc)
    a.wvm("V0")
    for b in range(4):
        for t in range(2): t_bread(a, 0, b, t)
    vq = [(s, p) for s in range(RV, 12) for p in range(4)]
    for s in range(12):
        a.wvm("A%d" % s, "V%d" % (s+1)); a.wlg("B%d" % s)
        if s == 0: a.stamp(5)
        n = 0
        for db in range(5):
            for b in range(4):
                c = ACC + (b*5+db)*4; ar = (s % NA)*20 + 4*db; br = 96 + (s & 1)*16 + 4*b
                a("v_mfma_f32_16x16x32_bf16 v[%d:%d], a[%d:%d], v[%d:%d], %s" % (c, c+3, ar, ar+3, br, br+3, "0" if s == 0 else "v[%d:%d]" % (c, c+3)))
                if s+1 < 12 and n < 16 and (n & 1) == 0: t_bread(a, s+1, n >> 2, (n >> 1) & 1)
                if b == 3 and s + NA < 12: t_aload1(a, s+NA, db, ldsc)
                if b == 1 and db in (1, 3) and vq and vq[0][0] - RV <= s: t_vload1(a, *vq.pop(0))
                n += 1
    assert not vq
    a.stamp(6)
    a("s_barrier\ns_nop 7")
    for b in range(1, 4):
        a("s_add_u32 s50, s44, %d\ns_and_b32 s50, s50, 3\ns_mul_i32 s50, s50, %d\ns_add_u32 s50, s50, %d\nv_add_u32 v2, s50, v10" % (b, 15360, (b-1)*5120))
        for db in range(5):
            c = ACC + (b*5+db)*4
            a.lgi("ds_write_b128 v2, v[%d:%d] offset:%d" % (c, c+3, db*1024), "rw")
    a("s_mul_i32 s50, s44, 15360\nv_add_u32 v2, s50, v10")
    a.wall(vm=False); a("s_barrier")
    for db in range(5):
        for b in range(3):
            r = 36 + (db*3+b)*4
            a.lgi("ds_read_b128 v[%d:%d], v2 offset:%d" % (r, r+3, b*5120 + db*1024), "rr%d" % db)
    if pre_store: pre_store()
    a("s_lshl_b32 s50, s48, 2\ns_add_u32 s50, s50, s44\ns_mul_i32 s50, s50, 20\ns_lshr_b32 s51, s47, 1\ns_mul_i32 s51, s51, 5\ns_add_u32 s50, s50, s51")
    a("s_lshl_b32 s50, s50, 10\ns_add_u32 s50, s50, %d\ns_and_b32 s51, s47, 1\ns_lshl_b32 s52, s51, 11\ns_add_u32 s52, s52, s50" % TF)
    a("s_lshl_b32 s51, s51, 9\ns_add_u32 s51, s51, s50\ns_add_u32 s51, s51, 4096\nv_lshlrev_b32 v3, 3, v1")
    for db in range(5):
        a.wlg("rr%d" % db)
        c = ACC + db*4; r = 36 + db*12
        for k in range(0, 4, 2):
            a("v_pk_add_f32 v[%d:%d], v[%d:%d], v[%d:%d]" % (c+k, c+k+1, c+k, c+k+1, r+k, r+k+1))
            a("v_pk_add_f32 v[%d:%d], v[%d:%d], v[%d:%d]" % (r+4+k, r+5+k, r+4+k, r+5+k, r+8+k, r+9+k))
        for k in range(0, 4, 2):
            a("v_pk_add_f32 v[%d:%d], v[%d:%d], v[%d:%d]" % (c+k, c+k+1, c+k, c+k+1, r+4+k, r+5+k))
        o = 96 + 2*db
        a("v_cvt_pk_bf16_f32 v%d, v%d, v%d\nv_cvt_pk_bf16_f32 v%d, v%d, v%d" % (o, c, c+1, o+1, c+2, c+3))
        if db in (1, 3): a.vmi("buffer_store_dwordx4 v[%d:%d], v10, s[24:27], s52 offen offset:%d%s" % (o-2, o+1, (db >> 1)*1024, stsc), "tst")
        if db == 4: a.vmi("buffer_store_dwordx2 v[%d:%d], v3, s[24:27], s51 offen%s" % (o, o+1, stsc), "tst")

XS = 36864
def stage_x(a, stsc, pre_store=None):
    srd(a, 28, 4, 2048*640*2); srd(a, 32, 12, 640*640*2)
    a("s_sub_u32 s47, s45, 6\ns_lshl_b32 s47, s47, 3\ns_lshr_b32 s50, s46, 2\ns_add_u32 s47, s47, s50\ns_and_b32 s48, s46, 3")
    a("s_movk_i32 s53, 1280\nv_lshrrev_b32 v11, 3, v1\ns_lshl_b32 s50, s44, 5\nv_add_u32 v11, s50, v11\nv_and_b32 v12, 7, v1\nv_lshrrev_b32 v13, 4, v1")
    for p in range(4):
        a("v_add_u32 v14, %d, v13\nv_and_b32 v14, 7, v14\nv_xor_b32 v14, v14, v12\nv_add_u32 v15, %d, v11\nv_mul_u32_u24 v15, s53, v15" % (4*p, 8*p))
        a("v_lshl_add_u32 v%d, v14, 4, v15" % (2+p))
        if p: a("v_subrev_u32 v%d, %d, v%d" % (2+p, 1024*p, 2+p))
    a("s_movk_i32 s54, 3277\ns_lshl_b32 s50, s44, 4")
    UR = [6, 7, 8, 9, 11]
    for p in range(5):
        a("v_add_u32 v12, %d, v1\nv_mul_u32_u24 v13, s54, v12\nv_lshrrev_b32 v13, 16, v13\nv_mul_u32_u24 v14, 20, v13\nv_sub_u32 v12, v12, v14" % (64*p))
        a("v_lshrrev_b32 v14, 2, v13\nv_and_b32 v14, 2, v14\nv_xor_b32 v12, v12, v14\nv_add_u32 v13, s50, v13\nv_mul_u32_u24 v13, s53, v13\nv_lshl_add_u32 v%d, v12, 4, v13" % UR[p])
        if 0 < p < 4: a("v_subrev_u32 v%d, %d, v%d" % (UR[p], 1024*p, UR[p]))
    a("s_mul_i32 s55, s47, %d\ns_mul_i32 s56, s48, 320\ns_lshl_b32 s57, s44, 12\ns_mul_i32 s58, s44, 5120\ns_add_u32 s58, s58, 16384" % (128*1280))
    if a.opt.get("rot"):
        a("s_mul_i32 s50, s48, 5\ns_lshr_b32 s50, s50, 1\ns_and_b32 s51, s47, 7\ns_add_u32 s50, s50, s51\ns_cmp_ge_u32 s50, 10\ns_cselect_b32 s51, 10, 0\ns_sub_u32 s50, s50, s51")
    else: a("s_mov_b32 s50, 0")
    a("s_lshl_b32 s86, s50, 7\ns_add_u32 s86, s86, s55\ns_add_u32 s87, s55, 1280\ns_mul_i32 s88, s50, 81920\ns_add_u32 s88, s88, s56\ns_add_u32 s90, s56, 819200")
    def dma1(st, i):
        sl = (st % 4)*XS
        if i < 4:
            if i == 0 and st > 0: a("s_add_u32 s86, s86, 128\ns_cmp_eq_u32 s86, s87\ns_cselect_b32 s86, s55, s86")
            a("s_add_u32 m0, s57, %d\ns_nop 0" % sl)
            a.vmi("buffer_load_dwordx4 v%d, s[28:31], s86 offen offset:%d%s lds" % (2+i, 1024*i, a.opt.get("xnt", "")), "S%d" % st)
        else:
            p = i - 4
            if p == 0 and st > 0: a("s_add_u32 s88, s88, 81920\ns_cmp_eq_u32 s88, s90\ns_cselect_b32 s88, s56, s88")
            a("s_add_u32 m0, s58, %d\ns_nop 0" % (sl + (4096 if p == 4 else 0)))
            a.vmi("buffer_load_dwordx4 v%d, s[32:35], s88 offen offset:%d%s lds" % (UR[p], 1024*(p & 3) if p < 4 else 0, a.opt.get("unt", "")), "S%d" % st)
    def dma(st):
        for i in range(9): dma1(st, i)
    XP = a.opt.get('xpre', 2)
    for st in range(XP): dma(st)
    dq = [(st, i) for st in range(XP, 10) for i in range(9)]
    free = 4
    if a.opt.get('warm') == 1 and pre_store:
        poll_issue(a, 168, 4, 's60'); poll_issue(a, 172, 16, 's61')
    a("v_and_b32 v12, 15, v1\nv_lshrrev_b32 v13, 4, v1\nv_lshrrev_b32 v14, 1, v12\nv_xor_b32 v14, v14, v13\ns_lshr_b32 s50, s44, 1\ns_lshl_b32 s50, s50, 13")
    a("v_lshlrev_b32 v12, 7, v12\nv_lshl_add_u32 v12, v14, 4, v12\nv_add_u32 v176, s50, v12\nv_xor_b32 v177, 64, v176")
    a("v_add_u32 v178, %d, v176\nv_add_u32 v179, %d, v177" % (2*XS, 2*XS))
    a("v_lshlrev_b32 v12, 3, v13\nv_bfe_u32 v14, v1, 2, 2\nv_add_u32 v12, v12, v14\ns_movk_i32 s50, 320\nv_mul_u32_u24 v12, s50, v12\nv_and_b32 v14, 3, v1\nv_lshl_add_u32 v12, v14, 3, v12")
    a("s_and_b32 s50, s44, 1\ns_mul_i32 s51, s50, 160\ns_add_u32 s51, s51, 16384\nv_add_u32 v12, s51, v12\nv_and_b32 v13, 1, v13\nv_lshlrev_b32 v13, 5, v13")
    a("s_lshl_b32 s50, s50, 1\ns_sub_u32 s50, 1, s50\nv_mul_lo_u32 v13, v13, s50\nv_add_u32 v180, v12, v13\nv_sub_u32 v181, v12, v13")
    a("v_add_u32 v182, %d, v180\nv_add_u32 v183, %d, v181" % (2*XS, 2*XS))
    ACC = 16; FB = 96
    def reads(u):
        st, k = u >> 1, u & 1; sl = st % 4; hi = (sl >> 1)*2; lo = (sl & 1)*XS; fb = FB + 36*(u & 1)
        R = []
        for i in range(5):
            if i < 4: R.append("ds_read_b128 v[%d:%d], v%d offset:%d" % (fb+4*i, fb+4*i+3, 176+hi+k, lo + i*2048))
            for t in range(2):
                r = fb + 16 + 4*i + 2*t
                R.append("ds_read_b64_tr_b16 v[%d:%d], v%d offset:%d" % (r, r+1, 180+hi+(i & 1), lo + (32*k+4*t)*320 + 32*i))
        return R
    a.wvm("S0"); a("s_barrier")
    a.stamp(1)
    for r in reads(0): a.lgi(r, "F0")
    for u in range(20):
        a.wlg("F%d" % u)
        R = reads(u+1) if u < 19 else []
        fb = FB + 36*(u & 1); n = 0
        for eb in range(5):
            for mb in range(4):
                c = ACC + (eb*4+mb)*4; ar = fb + 16 + 4*eb; br = fb + 4*mb
                a("v_mfma_f32_16x16x32_bf16 v[%d:%d], v[%d:%d], v[%d:%d], %s" % (c, c+3, ar, ar+3, br, br+3, "0" if u == 0 else "v[%d:%d]" % (c, c+3)))
                if n == 1 and (u & 1) and u < 19:
                    st = u >> 1
                    a.wvm("S%d" % (st+1)); a("s_barrier"); free = st + 5
                if n >= 1 and R: a.lgi(R.pop(0), "F%d" % (u+1))
                if n % a.opt.get('xev', 4) == a.opt.get('xev', 4) - 1 and dq and dq[0][0] < free: dma1(*dq.pop(0))
                n += 1
        assert not R
    a.stamp(6)
    assert not dq
    if pre_store: pre_store()
    a("s_lshl_b32 s50, s47, 3\ns_lshr_b32 s51, s44, 1\ns_lshl_b32 s51, s51, 2\ns_add_u32 s50, s50, s51\ns_mul_i32 s50, s50, 20\ns_mul_i32 s51, s48, 5\ns_add_u32 s50, s50, s51")
    a("s_lshl_b32 s50, s50, 10\ns_add_u32 s50, s50, %d\ns_and_b32 s51, s44, 1\ns_lshl_b32 s52, s51, 11\ns_add_u32 s52, s52, s50" % XF)
    a("s_lshl_b32 s51, s51, 9\ns_add_u32 s51, s51, s50\ns_add_u32 s51, s51, 4096\nv_lshlrev_b32 v3, 3, v1\ns_nop 3")
    for mb in range(4):
        o = 96 + 12*mb
        for eb in range(5):
            c = ACC + (eb*4+mb)*4
            a("v_cvt_pk_bf16_f32 v%d, v%d, v%d\nv_cvt_pk_bf16_f32 v%d, v%d, v%d" % (o+2*eb, c, c+1, o+2*eb+1, c+2, c+3))
            if eb in (1, 3): a.vmi("buffer_store_dwordx4 v[%d:%d], v10, s[24:27], s52 offen offset:%d%s" % (o+2*eb-2, o+2*eb+1, (eb >> 1)*1024, stsc), "xst")
            if eb == 4: a.vmi("buffer_store_dwordx2 v[%d:%d], v3, s[24:27], s51 offen%s" % (o+8, o+9, stsc), "xst")
        if mb < 3: a("s_add_u32 s52, s52, 20480\ns_add_u32 s51, s51, 20480")

def y_coords(a):
    a("s_lshr_b32 s81, s45, 1\ns_lshl_b32 s81, s81, 2\ns_lshr_b32 s50, s46, 3\ns_add_u32 s81, s81, s50")
    a("s_and_b32 s49, s45, 1\ns_lshl_b32 s49, s49, 3\ns_and_b32 s50, s46, 7\ns_add_u32 s49, s49, s50")
def y_setup(a):
    a("s_mov_b32 s47, s81\ns_mov_b32 s48, s49")
    srd(a, 28, 16, 2048*1536*2)
    a("v_lshlrev_b32 v11, 3, v1\nv_add_u32 v12, 4096, v11\nv_add_u32 v13, 61440, v10\nv_add_u32 v14, 61440, v11")
    a("s_lshl_b32 s55, s47, 3\ns_lshl_b32 s50, s44, 1\ns_add_u32 s55, s55, s50\ns_mul_i32 s55, s55, 20480\ns_add_u32 s55, s55, %d" % XF)
    a("s_mul_i32 s56, s48, 122880\ns_add_u32 s56, s56, %d" % TF)
    for i in range(3):
        a("s_mul_i32 s50, s44, 3\ns_add_u32 s50, s50, %d\ns_and_b32 s51, s50, 1\ns_lshr_b32 s50, s50, 1\ns_mul_i32 s50, s50, 20480\ns_lshl_b32 s51, s51, 10\ns_add_u32 s%d, s50, s51" % (i, 57+i))
def y_xload(a, ks, sc):
    G, r = divmod(ks, 5)
    for mb in range(2):
        d = (ks*2+mb)*4
        a("s_add_u32 s50, s55, %d" % (mb*20480 + G*5120))
        if r < 4: a.vmi("buffer_load_dwordx4 a[%d:%d], v10, s[24:27], s50 offen offset:%d%s" % (d, d+3, r*1024, sc), "X%d" % ks)
        else:
            for h in range(2): a.vmi("buffer_load_dwordx2 a[%d:%d], v12, s[24:27], s50 offen offset:%d%s" % (d+2*h, d+2*h+1, h*512, sc), "X%d" % ks)
def y_tload1(a, st, i, sc):
    a("s_add_u32 m0, s%d, %d\ns_add_u32 s50, s56, m0" % (57+i, st*2048))
    a.vmi("buffer_load_dwordx4 v10, s[24:27], s50 offen%s lds" % sc, "T%d" % st)
def stage_y_main(a, sc, xfirst):
    ACC = 16; FB = 64
    q = []
    for st in range(10):
        q += [lambda st=st, i=i: y_tload1(a, st, i, sc) for i in range(3)]
        if not xfirst: q += [lambda k=2*st: y_xload(a, k, sc), lambda k=2*st+1: y_xload(a, k, sc)]
    for i in range(a.opt.get("ypre", 2)*(3 if xfirst else 5)): q.pop(0)()
    ev = a.opt.get("yev", 4)
    def reads(ks):
        R = []; fb = FB + 24*(ks & 1)
        for nb in range(6):
            off = (nb % 3)*20480 + ks*1024; r = fb + 4*nb
            if ks % 5 < 4: R.append(["ds_read_b128 v[%d:%d], v%d offset:%d" % (r, r+3, 10 if nb < 3 else 13, off)])
            else: R.append(["ds_read_b64 v[%d:%d], v%d offset:%d" % (r+2*h, r+2*h+1, 11 if nb < 3 else 14, off+512*h) for h in range(2)])
        return R
    a.wvm("T0"); a("s_barrier")
    a.stamp(12)
    for rr in reads(0):
        for r in rr: a.lgi(r, "F0")
    for ks in range(20):
        a.wvm("X%d" % ks); a.wlg("F%d" % ks)
        R = reads(ks+1) if ks < 19 else []
        fb = FB + 24*(ks & 1); n = 0
        for nb in range(6):
            for mb in range(2):
                c = ACC + (nb*2+mb)*4; ar = fb + 4*nb; br = (ks*2+mb)*4
                a("v_mfma_f32_16x16x32_bf16 v[%d:%d], v[%d:%d], a[%d:%d], %s" % (c, c+3, ar, ar+3, br, br+3, "0" if ks == 0 else "v[%d:%d]" % (c, c+3)))
                if n == 1 and (ks & 1) and ks < 19:
                    a.wvm("T%d" % ((ks >> 1)+1)); a("s_barrier")
                if n >= 1 and R:
                    for r in R.pop(0): a.lgi(r, "F%d" % (ks+1))
                if n % ev == ev - 1 and q: q.pop(0)()
                n += 1
    assert not q
    a.stamp(13)
    a("v_and_b32 v2, 15, v1\nv_lshrrev_b32 v3, 4, v1\ns_movk_i32 s50, 3072\nv_mul_u32_u24 v2, s50, v2\nv_lshl_add_u32 v2, v3, 4, v2")
    a("s_lshl_b32 s50, s47, 2\ns_add_u32 s50, s50, s44\ns_mul_i32 s50, s50, %d\ns_mul_i32 s51, s48, 192\ns_add_u32 s50, s50, s51\ns_add_u32 s51, s50, %d\ns_nop 1" % (32*3072, 16*3072))
    for P in range(3):
        for mb in range(2):
            o = FB + (P*2+mb)*4
            for sub in range(2):
                c = ACC + ((2*P+sub)*2+mb)*4
                a("v_cvt_pk_bf16_f32 v%d, v%d, v%d\nv_cvt_pk_bf16_f32 v%d, v%d, v%d" % (o+2*sub, c, c+1, o+2*sub+1, c+2, c+3))
            a.vmi("buffer_store_dwordx4 v[%d:%d], v2, s[28:31], s%d offen offset:%d%s" % (o, o+3, 50+mb, 64*P, a.opt.get("ysc", "")), "yst")

def kd(name, vg, acc):
    return """.section .rodata,"a"
.p2align 6
.amdhsa_kernel %s
  .amdhsa_next_free_vgpr %d
  .amdhsa_next_free_sgpr 96
  .amdhsa_accum_offset %d
  .amdhsa_group_segment_fixed_size 0
  .amdhsa_kernarg_size 72
  .amdhsa_user_sgpr_count 2
  .amdhsa_user_sgpr_kernarg_segment_ptr 1
  .amdhsa_system_sgpr_workgroup_id_x 1
.end_amdhsa_kernel
""" % (name, vg, acc)
def head(name): return ".text\n.globl %s\n.p2align 8\n.type %s,@function\n%s:\n" % (name, name, name)
HDR = open("standalone__weight_only_int_quip__prompt.s.ref").read().split("; Override")[0] if len(sys.argv) > 0 else ""

def gen_multi(opt):
    out = HDR
    out += "; @launch kernel=qd_kernel grid=(256,1,1) block=(256,1,1) lds=151552\n"
    out += "; @launch kernel=qtx_kernel grid=(256,1,1) block=(256,1,1) lds=147456\n"
    out += "; @launch kernel=qy_kernel grid=(256,1,1) block=(256,1,1) lds=122880\n"
    out += '.amdgcn_target "amdgcn-amd-amdhsa--gfx950"\n'
    a = Asm(opt); prologue(a, 256, "L_d_end"); a("s_cmp_ge_u32 s45, 6\ns_cbranch_scc1 L_d_end")
    t_coords(a); stage_d_loads(a); stage_d_compute(a, ""); a.wall(); write_stamps(a, 0); a("L_d_end:\ns_endpgm")
    out += head("qd_kernel") + a.text()
    a = Asm(opt); a.uid = 100; prologue(a, 256, "L_tx_end"); a("s_cmp_ge_u32 s45, 6\ns_cbranch_scc1 L_x")
    t_coords(a); t_setup(a)
    stage_t_main(a, "", "", 0); a("s_branch L_tx_fin\nL_x:"); a.vm = []; a.lg = []
    stage_x(a, ""); a("L_tx_fin:"); a.wall(); write_stamps(a, 1); a("L_tx_end:\ns_endpgm")
    out += head("qtx_kernel") + a.text()
    a = Asm(opt); a.uid = 200; prologue(a, 256, "L_y_end"); y_coords(a); y_setup(a); stage_y_main(a, "", False); a.wall(); write_stamps(a, 2); a("L_y_end:\ns_endpgm")
    out += head("qy_kernel") + a.text()
    out += kd("qd_kernel", 160, 160) + kd("qtx_kernel", 192+80, 192) + kd("qy_kernel", 128+160, 128)
    return out

FD, FT, FX = FL + 0x8000, FL + 0x10000, FL + 0x18000
SPIN = 20000
def poll_issue(a, r, n, soff):
    a("v_min_u32 v%d, %d, v1\nv_lshlrev_b32 v%d, 7, v%d" % (r+2, n-1, r+2, r+2))
    a.vmi("buffer_load_dwordx2 v[%d:%d], v%d, s[24:27], %s offen sc1" % (r, r+1, r+2, soff), "poll%d" % r)
def poll_check(a, r, soff):
    a.wvm("poll%d" % r)
    lp, ok = a.label("spin"), a.label("ok")
    a("s_movk_i32 s63, %d\n%s:" % (SPIN, lp))
    a("v_cmp_ne_u32 vcc, s80, v%d\nv_cmp_ne_u32 s[84:85], s62, v%d\ns_or_b64 vcc, vcc, s[84:85]\ns_cbranch_vccz %s" % (r, r+1, ok))
    a("s_sub_u32 s63, s63, 1\ns_cmp_eq_u32 s63, 0\ns_cbranch_scc1 %s" % ok)
    if a.opt.get("sleep"): a("s_sleep %d" % a.opt["sleep"])
    a("buffer_load_dwordx2 v[%d:%d], v%d, s[24:27], %s offen sc1\ns_waitcnt vmcnt(0)\ns_branch %s\n%s:" % (r, r+1, r+2, soff, lp, ok))
def flag_store(a, soff):
    l = a.label("nf")
    a("s_barrier\ns_cmp_lg_u32 s44, 0\ns_cbranch_scc1 %s" % l)
    a("v_mov_b32 v186, s80\nv_mov_b32 v187, s62\nv_mov_b32 v188, 0\ns_mov_b64 s[84:85], exec\ns_mov_b64 exec, 1")
    a("buffer_store_dwordx2 v[186:187], v188, s[24:27], %s offen sc1\ns_mov_b64 exec, s[84:85]\n%s:" % (soff, l))

def gen_persist(opt):
    out = HDR + "; @launch grid=(256,1,1) block=(256,1,1) lds=151552\n"
    out += '.amdgcn_target "amdgcn-amd-amdhsa--gfx950"\n'
    a = Asm(opt); sc = " sc1"
    prologue(a, 256, "L_end")
    a("s_add_u32 s22, s20, 0x%x\ns_addc_u32 s23, s21, 0\ns_load_dword s80, s[22:23], 0" % FL)
    y_coords(a)
    a("s_lshl_b32 s60, s81, 9\ns_add_u32 s60, s60, 0x%x" % FX)
    a("s_mul_i32 s61, s49, 3\ns_lshr_b32 s61, s61, 1\ns_lshl_b32 s61, s61, 10\ns_add_u32 s61, s61, 0x%x" % FT)
    nonce = "s_waitcnt lgkmcnt(0)\ns_mul_i32 s80, s80, 0x9E3779B1\ns_add_u32 s80, s80, 0x7F4A7C15\ns_xor_b32 s62, s80, 0x5bd1e995\ns_mul_i32 s62, s62, 0x85EBCA6B"
    a("s_cmp_ge_u32 s45, 6\ns_cbranch_scc1 L_x")
    t_coords(a); stage_d_loads(a); t_setup(a)
    a("s_mul_i32 s59, s47, 3072\ns_add_u32 s59, s59, 0x%x\ns_lshl_b32 s50, s48, 7\ns_add_u32 s58, s59, s50\ns_mul_i32 s50, s44, 768\ns_add_u32 s59, s59, s50" % FD)
    a("s_lshl_b32 s89, s48, 10\ns_lshl_b32 s50, s47, 7\ns_add_u32 s89, s89, s50\ns_add_u32 s89, s89, 0x%x" % FT)
    if opt.get("warm") == 1:
        poll_issue(a, 164, 6, "s59"); poll_issue(a, 168, 4, "s60"); poll_issue(a, 172, 16, "s61")
    if opt.get("warm") == 2:
        a("v_mov_b32 v164, 0\nv_mov_b32 v165, 0\nv_mov_b32 v166, 0\ns_cmp_eq_u32 s44, 0\ns_cselect_b32 s50, s58, s89\ns_mov_b64 exec, 1")
        a.vmi("buffer_store_dwordx2 v[164:165], v166, s[24:27], s50 offen sc1", "wst"); a("s_mov_b64 exec, -1")
    a("v_mov_b32 v160, v2\nv_mov_b32 v161, v3\nv_mov_b32 v162, v4\nv_mov_b32 v163, v5")
    vp = opt.get("vpre", 2)
    for st in range(vp): t_vload(a, st)
    a(nonce)
    stage_d_compute(a, sc)
    a("v_mov_b32 v2, v160\nv_mov_b32 v3, v161\nv_mov_b32 v4, v162\nv_mov_b32 v5, v163")
    a.stamp(2)
    vm = opt.get("vmid", 5)
    for st in range(vp, vm): t_vload(a, st)
    a.wvm("dst")
    flag_store(a, "s58"); a.stamp(3)
    vl = opt.get("vlate", 6)
    for st in range(vm, vl): t_vload(a, st)
    poll_issue(a, 180, 6, "s59")
    for st in range(vl, RV): t_vload(a, st)
    poll_check(a, 180, "s59")
    a.stamp(4)
    stage_t_main(a, sc, sc, RV, pre_store=lambda: poll_issue(a, 180, 4, "s60"))
    a("s_mov_b32 s58, s89")
    a("s_branch L_pub\nL_x:"); a.vm = []; a.lg = []
    a(nonce)
    stage_x(a, sc, pre_store=lambda: poll_issue(a, 180, 4, "s60"))
    a("s_lshl_b32 s58, s47, 9\ns_lshl_b32 s50, s48, 7\ns_add_u32 s58, s58, s50\ns_add_u32 s58, s58, 0x%x" % FX)
    a("L_pub:"); a.stamp(7); a.wall(); a.stamp(8)
    flag_store(a, "s58")
    y_setup(a)
    poll_check(a, 180, "s60"); a.stamp(9)
    xl = opt.get("xlate", 14)
    for ks in range(xl): y_xload(a, ks, sc)
    poll_issue(a, 180, 16, "s61")
    for ks in range(xl, 20): y_xload(a, ks, sc)
    a.stamp(10)
    poll_check(a, 180, "s61"); a.stamp(11)
    stage_y_main(a, sc, True)
    a("s_or_b32 s50, s2, s44\ns_cmp_lg_u32 s50, 0\ns_cbranch_scc1 L_fin")
    a("s_mov_b32 s60, 0x%x" % FX)
    poll_issue(a, 180, 64, "s60"); a.wall(); poll_check(a, 180, "s60")
    a("v_mov_b32 v186, s80\nv_mov_b32 v188, 0\ns_mov_b32 s60, 0x%x\ns_mov_b64 exec, 1\nbuffer_store_dword v186, v188, s[24:27], s60 offen sc1\ns_mov_b64 exec, -1" % FL)
    a("L_fin:"); a.stamp(14); a.wall(); write_stamps(a, 0); a("L_end:\ns_endpgm")
    out += head(KN) + a.text() + kd(KN, 192+160, 192)
    return out

if __name__ == "__main__":
    opt = {}
    mode = sys.argv[1]; outp = sys.argv[2]
    for kv in sys.argv[3:]:
        k, v = kv.split("="); opt[k] = int(v) if v.lstrip("-").isdigit() else " " + v.replace("+", " ")
    open(outp, "w").write(globals()["gen_" + mode](opt))
```

```python
import sys
KN = "standalone__weight_only_int_quip__prompt_kernel"
WQ, TF, XF, FL, ST = 0x0, 0x200000, 0x400000, 0x700000, 0x780000
WS_BYTES = 0x800000

class Asm:
    def __init__(s, opt):
        s.L = []; s.vm = []; s.lg = []; s.opt = opt; s.nst = 0; s.uid = 0; s.closed = set()
    def __call__(s, t):
        for x in t.split("\n"):
            x = x.strip()
            if x: s.L.append(x if x.endswith(":") else "    " + x)
    def vmi(s, t, tag):
        assert tag not in s.closed, tag
        s(t); s.vm.append(tag)
    def lgi(s, t, tag): s(t); s.lg.append(tag)
    def _n(s, q, tags):
        idx = [i for i, t in enumerate(q) if t in tags]
        if not idx: return None
        n = len(q) - 1 - max(idx)
        del q[:max(idx) + 1]
        return n
    def wvm(s, *tags):
        s.closed.update(t for t in tags if not t.startswith('poll'))
        n = s._n(s.vm, tags)
        if n is not None: s("s_waitcnt vmcnt(%d)" % min(n, 63))
    def wlg(s, *tags):
        n = s._n(s.lg, tags)
        if n is not None: s("s_waitcnt lgkmcnt(%d)" % min(n, 15))
    def wall(s, vm=True, lg=True):
        s("s_waitcnt" + (" vmcnt(0)" if vm else "") + (" lgkmcnt(0)" if lg else ""))
        if vm: s.vm = []
        if lg: s.lg = []
    def stamp(s, i, early=False):
        if s.opt.get("st0") and i in (9, 10) and not early: return
        if early and not s.opt.get("st0"): return
        if s.opt.get("stamps"):
            s("s_memrealtime s[82:83]"); s.wall(vm=False); s("s_mov_b32 s%d, s82" % (64 + i))
    def label(s, b): s.uid += 1; return "L_%s_%d" % (b, s.uid)
    def text(s): return "\n".join(s.L) + "\n"

def srd(a, d, lo, nbytes):
    a("s_mov_b32 s%d, s%d\ns_and_b32 s%d, s%d, 0xffff\ns_mov_b32 s%d, 0x%x\ns_mov_b32 s%d, 0x20000" % (d, lo, d+1, lo+1, d+2, nbytes, d+3))

def prologue(a, nwg, end):
    a("s_cmp_ge_u32 s2, %d\ns_cbranch_scc1 %s" % (nwg, end))
    if a.opt.get("stamps"):
        for i in range(8): a("s_mov_b64 s[%d:%d], 0" % (64+2*i, 65+2*i))
    a.stamp(0)
    a("s_load_dwordx16 s[4:19], s[0:1], 0\ns_load_dwordx2 s[20:21], s[0:1], 64")
    a("v_lshrrev_b32 v2, 6, v0\nv_and_b32 v1, 63, v0\ns_and_b32 s45, s2, 7\nv_readfirstlane_b32 s44, v2\ns_lshr_b32 s46, s2, 3")
    a("v_lshlrev_b32 v10, 4, v1")
def ptrs_ready(a):
    a.stamp(9, True)
    a("s_waitcnt lgkmcnt(0)")
def ws_setup(a):
    srd(a, 24, 20, WS_BYTES)
    a("s_add_u32 s22, s20, 0x%x\ns_addc_u32 s23, s21, 0\ns_load_dword s80, s[22:23], 0" % FL)

def write_stamps(a, kidx):
    if not a.opt.get("stamps"): return
    a.stamp(15)
    l = a.label("nost")
    a("s_cmp_lg_u32 s44, 0\ns_cbranch_scc1 %s" % l)
    a("s_lshl_b32 s50, s2, 6\ns_add_u32 s50, s50, 0x%x" % (ST + kidx*0x4000))
    a("v_mov_b32 v2, 0")
    for i in range(4):
        for k in range(4): a("v_mov_b32 v%d, s%d" % (4+k, 64+4*i+k))
        a("buffer_store_dwordx4 v[4:7], v2, s[24:27], s50 offen offset:%d\ns_nop 1" % (16*i))
    a("s_waitcnt vmcnt(0)")
    if "pace" in a.opt:
        k = a.opt["pace"]; lp = a.label("pace")
        a("s_cmp_eq_u32 s%d, 0\ns_cselect_b32 s50, s64, s%d\ns_add_u32 s50, s50, 4000\n%s:\ns_sleep 2\ns_memrealtime s[82:83]\ns_waitcnt lgkmcnt(0)\ns_sub_u32 s51, s82, s50\ns_cmp_lt_i32 s51, 0\ns_cbranch_scc1 %s" % (64+k, 64+k, lp, lp))
    a("%s:" % l)

def t_coords(a):
    if a.opt.get("mix", 1):
        a("s_mul_i32 s50, s46, 43\ns_lshr_b32 s50, s50, 8\ns_mul_i32 s51, s50, 6\ns_sub_u32 s51, s46, s51")
        a("s_lshr_b32 s52, s45, 2\ns_lshl_b32 s47, s52, 2\ns_add_u32 s47, s47, s50\ns_and_b32 s48, s45, 3\ns_mul_i32 s48, s48, 6\ns_add_u32 s48, s48, s51")
        r = a.opt.get("rot", 1)
        a({2: "s_mov_b32 s51, 0", 3: "s_and_b32 s51, s51, 1", 4: "s_lshr_b32 s51, s51, 1"}.get(r, "s_lshl_b32 s51, s51, 1"))
        a("s_mul_i32 s91, s50, 3\ns_add_u32 s91, s91, s51\ns_add_u32 s91, s91, s52")
    else:
        a("s_cmp_ge_u32 s45, 3\ns_cselect_b32 s50, 1, 0\ns_mul_i32 s51, s50, 3\ns_sub_u32 s51, s45, s51")
        a("s_lshl_b32 s47, s50, 2\ns_lshr_b32 s52, s46, 3\ns_add_u32 s47, s47, s52")
        a("s_lshl_b32 s48, s51, 3\ns_and_b32 s52, s46, 7\ns_add_u32 s48, s48, s52")
        a("s_and_b32 s50, s47, 3\ns_mul_i32 s50, s50, 3\ns_and_b32 s51, s48, 7\ns_mul_i32 s51, s51, 3\ns_lshr_b32 s51, s51, 1\ns_add_u32 s91, s50, s51")
    a("s_cmp_ge_u32 s91, 12\ns_cselect_b32 s51, 12, 0\ns_sub_u32 s91, s91, s51")
    if not a.opt.get("rot", 1): a("s_mov_b32 s91, 0")
def x_coords(a):
    if a.opt.get("mix", 1):
        a("s_sub_u32 s50, s46, 24\ns_lshr_b32 s51, s50, 2\ns_lshl_b32 s47, s45, 1\ns_add_u32 s47, s47, s51\ns_and_b32 s48, s50, 3")
        a("s_mul_i32 s91, s48, 5\ns_lshr_b32 s91, s91, 1\ns_mul_i32 s51, s51, 5\ns_add_u32 s91, s91, s51\ns_add_u32 s91, s91, s45")
        a("s_cmp_ge_u32 s91, 10\ns_cselect_b32 s51, 10, 0\ns_sub_u32 s91, s91, s51")
    else:
        a("s_sub_u32 s47, s45, 6\ns_lshl_b32 s47, s47, 3\ns_lshr_b32 s50, s46, 2\ns_add_u32 s47, s47, s50\ns_and_b32 s48, s46, 3")
        a("s_mul_i32 s50, s48, 5\ns_lshr_b32 s50, s50, 1\ns_and_b32 s51, s47, 7\ns_add_u32 s91, s50, s51")
    a("s_cmp_ge_u32 s91, 10\ns_cselect_b32 s51, 10, 0\ns_sub_u32 s91, s91, s51")
    if not a.opt.get("xrot", a.opt.get("rot", 1)): a("s_mov_b32 s91, 0")

RV = 10; WR = RV*4096; DL = 8*4096
def stage_d_addr(a):
    a("v_lshrrev_b32 v2, 4, v1\ns_mul_i32 s50, s44, 20\nv_add_u32 v2, s50, v2\nv_and_b32 v3, 15, v1\ns_movk_i32 s53, 6144")
    for p in range(5):
        a("v_add_u32 v4, %d, v2\nv_and_b32 v5, 15, v4\nv_xor_b32 v5, v5, v3\nv_mul_u32_u24 v4, s53, v4\nv_lshl_add_u32 v%d, v5, 4, v4" % (4*p, 152+p))
        if 0 < p < 4: a("v_subrev_u32 v%d, %d, v%d" % (152+p, 1024*p, 152+p))
    a("s_mul_i32 s51, s47, %d\ns_lshl_b32 s52, s48, 8\ns_add_u32 s92, s51, s52" % (80*6144))
    a("s_mul_i32 s57, s44, %d\ns_add_u32 m0, s57, %d" % (WR, DL))
    a("v_and_b32 v157, 48, v1")
    a("s_and_b32 s52, s44, 1\ns_lshl_b32 s52, s52, 6\ns_lshl_b32 s53, s48, 7\ns_add_u32 s52, s52, s53")
    for u in range(3):
        a("s_lshr_b32 s53, s44, 1\ns_add_u32 s53, s53, %d\ns_min_u32 s53, s53, 4\ns_mul_i32 s54, s47, 5\ns_add_u32 s53, s53, s54\ns_lshr_b32 s53, s53, 3" % (2*u))
        a("s_mul_i32 s53, s53, 3072\ns_add_u32 s%d, s53, s52" % (93+u))
def stage_d_loads(a):
    srd(a, 28, 6, 640*1536*4)
    for p in range(5):
        if p == 4: a("s_add_u32 m0, s57, %d\ns_nop 0" % (DL + 4096))
        a.vmi("buffer_load_dwordx4 v%d, s[28:31], s92 offen offset:%d%s lds" % (152+p, 1024*(p & 3) if p < 4 else 0, a.opt.get("qnt", "")), "qw")
    srd(a, 36, 8, 5*1536*2); srd(a, 40, 10, 5*1536*2)
    for u in range(3):
        a.vmi("buffer_load_dwordx4 v[%d:%d], v157, s[36:39], s%d offen" % (128+8*u, 131+8*u, 93+u), "sz")
        a.vmi("buffer_load_dwordx4 v[%d:%d], v157, s[40:43], s%d offen" % (132+8*u, 135+8*u, 93+u), "sz")
def stage_d_raddr(a):
    a("v_and_b32 v11, 15, v1\nv_lshrrev_b32 v12, 4, v1\nv_lshlrev_b32 v12, 1, v12\ns_and_b32 s50, s44, 1\ns_lshl_b32 s50, s50, 3\nv_add_u32 v12, s50, v12\nv_xor_b32 v12, v12, v11")
    a("s_lshr_b32 s50, s44, 1\ns_lshl_b32 s50, s50, 4\nv_add_u32 v11, s50, v11\ns_movk_i32 s51, 3277\ns_mov_b32 s52, %d" % (WR - 5120))
    for u in range(3):
        a("v_add_u32 v13, %d, v11\nv_min_u32 v13, 79, v13\nv_mul_u32_u24 v14, s51, v13\nv_lshrrev_b32 v14, 16, v14\nv_mul_u32_u24 v14, s52, v14\nv_lshl_add_u32 v13, v13, 8, v14" % (32*u))
        a("v_add_u32 v13, %d, v13\nv_lshl_add_u32 v%d, v12, 4, v13\nv_xor_b32 v%d, 16, v%d" % (DL, 152+2*u, 153+2*u, 152+2*u))
    a("s_mul_i32 s50, s47, 5\ns_lshr_b32 s51, s44, 1\ns_add_u32 s50, s50, s51\ns_mul_i32 s50, s50, 48\ns_lshl_b32 s51, s48, 1\ns_add_u32 s50, s50, s51")
    a("s_and_b32 s51, s44, 1\ns_add_u32 s50, s50, s51\ns_lshl_b32 s50, s50, 10\ns_add_u32 s92, s50, %d\ns_add_u32 s93, s92, %d\ns_add_u32 s94, s92, %d" % (WQ, 96*1024, 192*1024))
def stage_d_compute(a, sc):
    def prep(u):
        s0, z0, t = 128+8*u, 132+8*u, 48+16*u
        for k in range(4):
            a("v_lshlrev_b32 v%d, 16, v%d\nv_and_b32 v%d, 0xffff0000, v%d" % (t+2*k, s0+k, t+2*k+1, s0+k))
            a("v_lshlrev_b32 v%d, 16, v%d\nv_and_b32 v%d, 0xffff0000, v%d" % (t+8+2*k, z0+k, t+8+2*k+1, z0+k))
        for k in range(0, 8, 2):
            a("v_pk_mul_f32 v[%d:%d], v[%d:%d], v[%d:%d] neg_lo:[1,0] neg_hi:[1,0]" % (t+8+k, t+9+k, t+8+k, t+9+k, t+k, t+k+1))
    a.wvm("qw", "sz"); prep(0); a("s_barrier"); a.stamp(1)
    for u in range(3):
        q = 16 + 8*u
        a.lgi("ds_read_b128 v[%d:%d], v%d" % (q, q+3, 152+2*u), "dq%d" % u)
        a.lgi("ds_read_b128 v[%d:%d], v%d" % (q+4, q+7, 153+2*u), "dq%d" % u)
    skip = a.label("dskip")
    for u in range(3):
        q = 16 + 8*u; t = 48+16*u; o = 100 + 4*u
        if u == 2: a.wlg("dq2"); a("s_cmp_ge_u32 s44, 2\ns_cbranch_scc1 %s" % skip)
        if u: prep(u)
        a.wlg("dq%d" % u)
        for k in range(8): a("v_cvt_f32_i32 v%d, v%d" % (q+k, q+k))
        for k in range(0, 8, 2): a("v_pk_fma_f32 v[%d:%d], v[%d:%d], v[%d:%d], v[%d:%d]" % (q+k, q+k+1, q+k, q+k+1, t+k, t+k+1, t+8+k, t+9+k))
        for k in range(4): a("v_cvt_pk_bf16_f32 v%d, v%d, v%d" % (o+k, q+2*k, q+2*k+1))
        a("buffer_store_dwordx4 v[%d:%d], v10, s[24:27], s%d offen%s" % (o, o+3, 92+u, sc))
        if u < 2: a.vm.append("dst")
    a("%s:" % skip)

def t_setup(a):
    srd(a, 32, 14, 1536*1536*2)
    a("v_lshrrev_b32 v6, 3, v1\nv_and_b32 v7, 7, v1\nv_lshrrev_b32 v8, 2, v1\nv_and_b32 v8, 4, v8\nv_xor_b32 v7, v7, v8")
    a("s_movk_i32 s50, 3072\nv_mul_u32_u24 v6, s50, v6\nv_lshl_add_u32 v2, v7, 4, v6")
    for p in range(1, 4): a("v_add_u32 v%d, %d, v2" % (2+p, p*(24576-1024)))
    a("v_lshrrev_b32 v11, 4, v1\nv_lshlrev_b32 v11, 3, v11\nv_bfe_u32 v12, v1, 2, 2\nv_add_u32 v11, v11, v12\nv_lshlrev_b32 v11, 7, v11")
    a("v_and_b32 v12, 3, v1\nv_lshrrev_b32 v13, 1, v1\nv_and_b32 v13, 4, v13\nv_xor_b32 v12, v12, v13\nv_lshl_add_u32 v11, v12, 4, v11")
    a("s_mov_b32 s53, s57")
    for b in range(4):
        a("s_add_u32 s50, s44, %d\ns_and_b32 s51, s50, 1\ns_lshl_b32 s51, s51, 3\ns_add_u32 s51, s51, s53\ns_and_b32 s50, s50, 2\ns_lshl_b32 s50, s50, 5" % b)
        a("v_xor_b32 v%d, s50, v11\nv_add_u32 v%d, s51, v%d" % (6+b, 6+b, 6+b))
    a("s_mul_i32 s55, s44, %d\ns_lshl_b32 s50, s48, 7\ns_add_u32 s55, s55, s50" % (12*32*3072))
    a("s_mul_i32 s56, s47, %d\ns_mul_i32 s50, s44, %d\ns_add_u32 s56, s56, s50\ns_add_u32 s56, s56, %d" % (5*48*1024, 12*1024, WQ))
    a("s_mov_b32 s50, s91")
    a("s_mul_i32 s86, s50, 98304\ns_add_u32 s86, s86, s55\ns_add_u32 s87, s55, %d\ns_lshl_b32 s88, s50, 10\ns_add_u32 s88, s88, s56\ns_add_u32 s90, s56, 12288" % (12*98304))
def t_vload1(a, s, p, setm0=True):
    if p == 0 and s > 0: a("s_add_u32 s86, s86, 98304\ns_cmp_eq_u32 s86, s87\ns_cselect_b32 s86, s55, s86")
    if setm0: a("s_add_u32 m0, s57, %d\ns_nop 0" % ((s % RV)*4096))
    a.vmi("buffer_load_dwordx4 v%d, s[32:35], s86 offen offset:%d%s lds" % (2+p, 1024*p, a.opt.get("vnt", "")), "V%d" % s)
def t_vload(a, s):
    for p in range(4): t_vload1(a, s, p, p == 0)
def t_aload1(a, s, b, sc):
    NA = a.opt.get("na", 4)
    r = (s % NA)*20 + 4*b
    if b == 0 and s > 0: a("s_add_u32 s88, s88, 1024\ns_cmp_eq_u32 s88, s90\ns_cselect_b32 s88, s56, s88")
    if b: a("s_add_u32 s50, s88, %d" % (b*48*1024))
    a.vmi("buffer_load_dwordx4 a[%d:%d], v10, s[24:27], %s offen%s" % (r, r+3, "s50" if b else "s88", sc), "A%d" % s)
def t_bread(a, s, b, t):
    r = 96 + (s & 1)*16 + 4*b + 2*t
    a.lgi("ds_read_b64_tr_b16 v[%d:%d], v%d offset:%d" % (r, r+1, 6+b, (s % RV)*4096 + t*512), "B%d" % s)
def stage_t_main(a, ldsc, stsc, vdone, pre_store=None):
    ACC = 16
    NA = a.opt.get("na", 4)
    vin = a.opt.get("vin", 0)
    for s in range(RV):
        if s >= vdone and (not vin or s < a.opt.get("vmin", 0)): t_vload(a, s)
        if s < NA:
            for b in range(5): t_aload1(a, s, b, ldsc)
    a.wvm("V0")
    for b in range(4):
        for t in range(2): t_bread(a, 0, b, t)
    vq = [(s, p) for s in range(max(vdone, a.opt.get('vmin', 0)) if vin else RV, 12) for p in range(4)]
    a("v_add_u32 v11, s57, v10")
    for b in range(1, 4):
        a("s_sub_u32 s50, s44, %d\ns_and_b32 s50, s50, 3\ns_mul_i32 s50, s50, %d\ns_add_u32 s50, s50, %d\nv_add_u32 v%d, s50, v10" % (b, WR, (b-1)*5120, 11+b))
    for s in range(12):
        a.wvm("A%d" % s, "V%d" % (s+1)); a.wlg("B%d" % s)
        if s == 0: a.stamp(5)
        order = [(b, db) for db in range(5) for b in range(4)] if s < 11 else [(b, db) for b in (1, 2, 3, 0) for db in range(5)]
        for n, (b, db) in enumerate(order):
            c = ACC + (b*5+db)*4; ar = (s % NA)*20 + 4*db; br = 96 + (s & 1)*16 + 4*b
            a("v_mfma_f32_16x16x32_bf16 v[%d:%d], a[%d:%d], v[%d:%d], %s" % (c, c+3, ar, ar+3, br, br+3, "0" if s == 0 else "v[%d:%d]" % (c, c+3)))
            if s+1 < 12 and n < 16 and (n & 1) == 0: t_bread(a, s+1, n >> 2, (n >> 1) & 1)
            if b == 3 and s + NA < 12: t_aload1(a, s+NA, db, ldsc)
            if b == 1 and db in ((0, 1, 2, 3) if vin == 1 else (0, 1, 2, 3, 4) if vin else (1, 3)) and vq and vq[0][0] - RV <= s: t_vload1(a, *vq.pop(0))
            if s == 11 and n >= 8:
                wb, wd = order[n-8]; c = ACC + (wb*5+wd)*4
                a.lgi("ds_write_b128 v11, v[%d:%d] offset:%d" % (c, c+3, (wb-1)*5120 + wd*1024), "rw")
    assert not vq
    a("s_nop 1")
    for wb, wd in order[12:15]:
        c = ACC + (wb*5+wd)*4
        a.lgi("ds_write_b128 v11, v[%d:%d] offset:%d" % (c, c+3, (wb-1)*5120 + wd*1024), "rw")
    a.wall(vm=False); a("s_barrier")
    a.stamp(6)
    for db in range(5):
        for b in range(3):
            r = 36 + (db*3+b)*4
            a.lgi("ds_read_b128 v[%d:%d], v%d offset:%d" % (r, r+3, 12+b, db*1024), "rr%d" % db)
    if pre_store: pre_store()
    a("s_lshl_b32 s50, s48, 2\ns_add_u32 s50, s50, s44\ns_mul_i32 s50, s50, 20\ns_lshr_b32 s51, s47, 1\ns_mul_i32 s51, s51, 5\ns_add_u32 s50, s50, s51")
    a("s_lshl_b32 s50, s50, 10\ns_add_u32 s50, s50, %d\ns_and_b32 s51, s47, 1\ns_lshl_b32 s52, s51, 11\ns_add_u32 s52, s52, s50" % TF)
    a("s_lshl_b32 s51, s51, 9\ns_add_u32 s51, s51, s50\ns_add_u32 s51, s51, 4096\nv_lshlrev_b32 v3, 3, v1")
    for db in range(5):
        a.wlg("rr%d" % db)
        c = ACC + db*4; r = 36 + db*12
        for k in range(0, 4, 2):
            a("v_pk_add_f32 v[%d:%d], v[%d:%d], v[%d:%d]" % (c+k, c+k+1, c+k, c+k+1, r+k, r+k+1))
            a("v_pk_add_f32 v[%d:%d], v[%d:%d], v[%d:%d]" % (r+4+k, r+5+k, r+4+k, r+5+k, r+8+k, r+9+k))
        for k in range(0, 4, 2):
            a("v_pk_add_f32 v[%d:%d], v[%d:%d], v[%d:%d]" % (c+k, c+k+1, c+k, c+k+1, r+4+k, r+5+k))
        o = 96 + 2*db
        a("v_cvt_pk_bf16_f32 v%d, v%d, v%d\nv_cvt_pk_bf16_f32 v%d, v%d, v%d" % (o, c, c+1, o+1, c+2, c+3))
        if db in (1, 3): a.vmi("buffer_store_dwordx4 v[%d:%d], v10, s[24:27], s52 offen offset:%d%s" % (o-2, o+1, (db >> 1)*1024, stsc), "tst")
        if db == 4: a.vmi("buffer_store_dwordx2 v[%d:%d], v3, s[24:27], s51 offen%s" % (o, o+1, stsc), "tst")

XS = 36864
def stage_x(a, stsc, pre_store=None):
    x_coords(a)
    a("s_movk_i32 s53, 1280\nv_lshrrev_b32 v11, 3, v1\ns_lshl_b32 s50, s44, 5\nv_add_u32 v11, s50, v11\nv_and_b32 v12, 7, v1\nv_lshrrev_b32 v13, 4, v1")
    for p in range(4):
        a("v_add_u32 v14, %d, v13\nv_and_b32 v14, 7, v14\nv_xor_b32 v14, v14, v12\nv_add_u32 v15, %d, v11\nv_mul_u32_u24 v15, s53, v15" % (4*p, 8*p))
        a("v_lshl_add_u32 v%d, v14, 4, v15" % (2+p))
        if p: a("v_subrev_u32 v%d, %d, v%d" % (2+p, 1024*p, 2+p))
    a("s_movk_i32 s54, 3277\ns_lshl_b32 s50, s44, 4")
    UR = [6, 7, 8, 9, 11]
    for p in range(5):
        a("v_add_u32 v12, %d, v1\nv_mul_u32_u24 v13, s54, v12\nv_lshrrev_b32 v13, 16, v13\nv_mul_u32_u24 v14, 20, v13\nv_sub_u32 v12, v12, v14" % (64*p))
        a("v_lshrrev_b32 v14, 2, v13\nv_and_b32 v14, 2, v14\nv_xor_b32 v12, v12, v14\nv_add_u32 v13, s50, v13\nv_mul_u32_u24 v13, s53, v13\nv_lshl_add_u32 v%d, v12, 4, v13" % UR[p])
        if 0 < p < 4: a("v_subrev_u32 v%d, %d, v%d" % (UR[p], 1024*p, UR[p]))
    a("s_mul_i32 s55, s47, %d\ns_mul_i32 s56, s48, 320\ns_lshl_b32 s57, s44, 12\ns_mul_i32 s58, s44, 5120\ns_add_u32 s58, s58, 16384" % (128*1280))
    a("s_mov_b32 s50, s91")
    a("s_lshl_b32 s86, s50, 7\ns_add_u32 s86, s86, s55\ns_add_u32 s87, s55, 1280\ns_mul_i32 s88, s50, 81920\ns_add_u32 s88, s88, s56\ns_add_u32 s90, s56, 819200")
    def dma1(st, i):
        sl = (st % 4)*XS
        if i < 4:
            if i == 0 and st > 0: a("s_add_u32 s86, s86, 128\ns_cmp_eq_u32 s86, s87\ns_cselect_b32 s86, s55, s86")
            a("s_add_u32 m0, s57, %d\ns_nop 0" % sl)
            a.vmi("buffer_load_dwordx4 v%d, s[28:31], s86 offen offset:%d%s lds" % (2+i, 1024*i, a.opt.get("xnt", "")), "S%d" % st)
        else:
            p = i - 4
            if p == 0 and st > 0: a("s_add_u32 s88, s88, 81920\ns_cmp_eq_u32 s88, s90\ns_cselect_b32 s88, s56, s88")
            a("s_add_u32 m0, s58, %d\ns_nop 0" % (sl + (4096 if p == 4 else 0)))
            a.vmi("buffer_load_dwordx4 v%d, s[32:35], s88 offen offset:%d%s lds" % (UR[p], 1024*(p & 3) if p < 4 else 0, a.opt.get("unt", "")), "S%d" % st)
    def dma(st):
        for i in range(9): dma1(st, i)
    ptrs_ready(a); srd(a, 28, 4, 2048*640*2); srd(a, 32, 12, 640*640*2)
    XP = a.opt.get('xpre', 2)
    for st in range(XP): dma(st)
    a.stamp(10, True)
    dq = [(st, i) for st in range(XP, 10) for i in range(9)]
    free = 4
    ws_setup(a); flag_addrs(a)
    a("v_and_b32 v12, 15, v1\nv_lshrrev_b32 v13, 4, v1\nv_lshrrev_b32 v14, 1, v12\nv_xor_b32 v14, v14, v13\ns_lshr_b32 s50, s44, 1\ns_lshl_b32 s50, s50, 13")
    a("v_lshlrev_b32 v12, 7, v12\nv_lshl_add_u32 v12, v14, 4, v12\nv_add_u32 v176, s50, v12\nv_xor_b32 v177, 64, v176")
    a("v_add_u32 v178, %d, v176\nv_add_u32 v179, %d, v177" % (2*XS, 2*XS))
    a("v_lshlrev_b32 v12, 3, v13\nv_bfe_u32 v14, v1, 2, 2\nv_add_u32 v12, v12, v14\ns_movk_i32 s50, 320\nv_mul_u32_u24 v12, s50, v12\nv_and_b32 v14, 3, v1\nv_lshl_add_u32 v12, v14, 3, v12")
    a("s_and_b32 s50, s44, 1\ns_mul_i32 s51, s50, 160\ns_add_u32 s51, s51, 16384\nv_add_u32 v12, s51, v12\nv_and_b32 v13, 1, v13\nv_lshlrev_b32 v13, 5, v13")
    a("s_lshl_b32 s50, s50, 1\ns_sub_u32 s50, 1, s50\nv_mul_lo_u32 v13, v13, s50\nv_add_u32 v180, v12, v13\nv_sub_u32 v181, v12, v13")
    a("v_add_u32 v182, %d, v180\nv_add_u32 v183, %d, v181" % (2*XS, 2*XS))
    ACC = 16; FB = 96
    def reads(u):
        st, k = u >> 1, u & 1; sl = st % 4; hi = (sl >> 1)*2; lo = (sl & 1)*XS; fb = FB + 36*(u & 1)
        R = []
        for i in range(5):
            if i < 4: R.append("ds_read_b128 v[%d:%d], v%d offset:%d" % (fb+4*i, fb+4*i+3, 176+hi+k, lo + i*2048))
            for t in range(2):
                r = fb + 16 + 4*i + 2*t
                R.append("ds_read_b64_tr_b16 v[%d:%d], v%d offset:%d" % (r, r+1, 180+hi+(i & 1), lo + (32*k+4*t)*320 + 32*i))
        return R
    a(NONCE); a.wvm("S0"); a("s_barrier")
    a.stamp(1)
    for r in reads(0): a.lgi(r, "F0")
    for u in range(20):
        a.wlg("F%d" % u)
        R = reads(u+1) if u < 19 else []
        fb = FB + 36*(u & 1); n = 0
        for eb in range(5):
            for mb in range(4):
                c = ACC + (eb*4+mb)*4; ar = fb + 16 + 4*eb; br = fb + 4*mb
                a("v_mfma_f32_16x16x32_bf16 v[%d:%d], v[%d:%d], v[%d:%d], %s" % (c, c+3, ar, ar+3, br, br+3, "0" if u == 0 else "v[%d:%d]" % (c, c+3)))
                if n == 1 and (u & 1) and u < 19:
                    st = u >> 1
                    a.wvm("S%d" % (st+1)); a("s_nop 0" if a.opt.get("xnobar") else "s_barrier"); free = st + 5
                if n >= 1 and R:
                    r = R.pop(0)
                    if not a.opt.get("xnoread"): a.lgi(r, "F%d" % (u+1))
                if n % a.opt.get('xev', 4) == a.opt.get('xev', 4) - 1 and dq and dq[0][0] < free:
                    d = dq.pop(0)
                    if not a.opt.get("xnodma"): dma1(*d)
                n += 1
        assert not R
    a.stamp(6)
    assert not dq
    if pre_store: pre_store()
    a("s_lshl_b32 s50, s47, 3\ns_lshr_b32 s51, s44, 1\ns_lshl_b32 s51, s51, 2\ns_add_u32 s50, s50, s51\ns_mul_i32 s50, s50, 20\ns_mul_i32 s51, s48, 5\ns_add_u32 s50, s50, s51")
    a("s_lshl_b32 s50, s50, 10\ns_add_u32 s50, s50, %d\ns_and_b32 s51, s44, 1\ns_lshl_b32 s52, s51, 11\ns_add_u32 s52, s52, s50" % XF)
    a("s_lshl_b32 s51, s51, 9\ns_add_u32 s51, s51, s50\ns_add_u32 s51, s51, 4096\nv_lshlrev_b32 v3, 3, v1\ns_nop 3")
    for mb in range(4):
        o = 96 + 12*mb
        for eb in range(5):
            c = ACC + (eb*4+mb)*4
            a("v_cvt_pk_bf16_f32 v%d, v%d, v%d\nv_cvt_pk_bf16_f32 v%d, v%d, v%d" % (o+2*eb, c, c+1, o+2*eb+1, c+2, c+3))
            if eb in (1, 3): a.vmi("buffer_store_dwordx4 v[%d:%d], v10, s[24:27], s52 offen offset:%d%s" % (o+2*eb-2, o+2*eb+1, (eb >> 1)*1024, stsc), "xst")
            if eb == 4: a.vmi("buffer_store_dwordx2 v[%d:%d], v3, s[24:27], s51 offen%s" % (o+8, o+9, stsc), "xst")
        if mb < 3: a("s_add_u32 s52, s52, 20480\ns_add_u32 s51, s51, 20480")

def y_coords(a):
    a("s_lshr_b32 s81, s45, 1\ns_lshl_b32 s81, s81, 2\ns_lshr_b32 s50, s46, 3\ns_add_u32 s81, s81, s50")
    a("s_and_b32 s49, s45, 1\ns_lshl_b32 s49, s49, 3\ns_and_b32 s50, s46, 7\ns_add_u32 s49, s49, s50")
def y_setup(a):
    a("s_mov_b32 s47, s81\ns_mov_b32 s48, s49")
    srd(a, 28, 16, 2048*1536*2)
    a("v_lshlrev_b32 v11, 3, v1\nv_add_u32 v12, 4096, v11\nv_add_u32 v13, 61440, v10\nv_add_u32 v14, 61440, v11")
    a("s_lshl_b32 s55, s47, 3\ns_lshl_b32 s50, s44, 1\ns_add_u32 s55, s55, s50\ns_mul_i32 s55, s55, 20480\ns_add_u32 s55, s55, %d" % XF)
    a("s_mul_i32 s56, s48, 122880\ns_add_u32 s56, s56, %d" % TF)
    for i in range(3):
        a("s_mul_i32 s50, s44, 3\ns_add_u32 s50, s50, %d\ns_and_b32 s51, s50, 1\ns_lshr_b32 s50, s50, 1\ns_mul_i32 s50, s50, 20480\ns_lshl_b32 s51, s51, 10\ns_add_u32 s%d, s50, s51" % (i, 57+i))
def y_xload1(a, ks, mb, sc):
    G, r = divmod(ks, 5)
    d = (ks*2+mb)*4
    a("s_add_u32 s50, s55, %d" % (mb*20480 + G*5120))
    if r < 4: a.vmi("buffer_load_dwordx4 a[%d:%d], v10, s[24:27], s50 offen offset:%d%s" % (d, d+3, r*1024, sc), "X%d" % ks)
    else:
        for h in range(2): a.vmi("buffer_load_dwordx2 a[%d:%d], v12, s[24:27], s50 offen offset:%d%s" % (d+2*h, d+2*h+1, h*512, sc), "X%d" % ks)
def y_xload(a, ks, sc):
    for mb in range(2): y_xload1(a, ks, mb, sc)
def y_tload1(a, st, i, sc):
    a("s_add_u32 m0, s%d, %d\ns_add_u32 s50, s56, m0" % (57+i, st*2048))
    a.vmi("buffer_load_dwordx4 v10, s[24:27], s50 offen%s lds" % sc, "T%d" % st)
def stage_y_main(a, sc, xdone):
    ACC = 16; FB = 64
    NT = a.opt.get("ytail", 0); K0 = 20 - NT
    q = [(min(2*st, K0) - 1.5, lambda st=st, i=i: y_tload1(a, st, i, sc)) for st in range(10) for i in range(3)]
    q += [(min(ks, K0) - a.opt.get("xlead", 0), lambda ks=ks, mb=mb: y_xload1(a, ks, mb, sc)) for ks in range(xdone, 20) for mb in range(2)]
    q = [f for d, f in sorted(q, key=lambda e: e[0])]
    for i in range(a.opt.get("ypre", 6)): q.pop(0)()
    ev = a.opt.get("yev", 4)
    def rd(r, nb, ks): return "ds_read_b128 v[%d:%d], v%d offset:%d" % (r, r+3, 10 if nb < 3 else 13, (nb % 3)*20480 + ks*1024)
    def rd2(r, nb, ks):
        if ks % 5 < 4: return [rd(r, nb, ks)]
        return ["ds_read_b64 v[%d:%d], v%d offset:%d" % (r+2*h, r+2*h+1, 11 if nb < 3 else 14, (nb % 3)*20480 + ks*1024 + 512*h) for h in range(2)]
    def reads(ks): return [rd2(FB + 24*(ks & 1) + 4*nb, nb, ks) for nb in range(6)]
    def tb(P): return 112 + 8*NT*(P & 1)
    def treads(P): return [rd2(tb(P) + 4*(2*j+sub), 2*P+sub, K0+j) for j in range(NT) for sub in range(2)]
    def epi_addr():
        a("v_and_b32 v2, 15, v1\nv_lshrrev_b32 v3, 4, v1\ns_movk_i32 s52, 3072\nv_mul_u32_u24 v2, s52, v2\nv_lshl_add_u32 v2, v3, 4, v2")
        a("s_lshl_b32 s52, s47, 2\ns_add_u32 s52, s52, s44\ns_mul_i32 s52, s52, %d\ns_mul_i32 s53, s48, 192\ns_add_u32 s52, s52, s53\ns_add_u32 s53, s52, %d" % (32*3072, 16*3072))
    def epi(P, mb, o):
        E = []
        for sub in range(2):
            c = ACC + ((2*P+sub)*2+mb)*4
            E.append(lambda c=c, sub=sub: a("v_cvt_pk_bf16_f32 v%d, v%d, v%d\nv_cvt_pk_bf16_f32 v%d, v%d, v%d" % (o+2*sub, c, c+1, o+2*sub+1, c+2, c+3)))
        E.append(lambda: a.vmi("buffer_store_dwordx4 v[%d:%d], v2, s[28:31], s%d offen offset:%d%s" % (o, o+3, 52+mb, 64*P, a.opt.get("ysc", "")), "yst"))
        return E
    def mfma(nb, mb, ar, ks):
        c = ACC + (nb*2+mb)*4; br = (ks*2+mb)*4
        a("v_mfma_f32_16x16x32_bf16 v[%d:%d], v[%d:%d], a[%d:%d], %s" % (c, c+3, ar, ar+3, br, br+3, "0" if ks == 0 else "v[%d:%d]" % (c, c+3)))
    epi_addr()
    a.wvm("T0"); a("s_barrier")
    a.stamp(12)
    for rr in reads(0):
        for r in rr: a.lgi(r, "F0")
    for ks in range(K0):
        a.wvm("X%d" % ks); a.wlg("F%d" % ks)
        R = reads(ks+1) if ks < K0-1 else treads(0) if NT else []
        fb = FB + 24*(ks & 1); n = 0
        for nb in range(6):
            for mb in range(2):
                mfma(nb, mb, fb + 4*nb, ks)
                if n == 1 and (ks & 1) and ks < 19:
                    a.wvm(*["T%d" % t for t in (range((ks >> 1)+1, 10) if ks == K0-1 else [(ks >> 1)+1])]); a("s_barrier")
                if n >= 1 and R:
                    for r in R.pop(0): a.lgi(r, "F%d" % (ks+1))
                if n % ev == ev - 1 and q: q.pop(0)()
                n += 1
        assert not R
    assert not q
    E = []
    for P in range(3 if NT else 0):
        if P == 0: a.wvm(*["X%d" % k for k in range(K0, 20)])
        a.wlg("F%d" % (K0+P))
        R = treads(P+1) if P < 2 else []
        n = 0
        for j in range(NT):
            for sub in range(2):
                for mb in range(2):
                    mfma(2*P+sub, mb, tb(P) + 4*(2*j+sub), K0+j)
                    if R and n % 2 == 0:
                        for r in R.pop(0): a.lgi(r, "F%d" % (K0+P+1))
                    if n >= 2 and E: E.pop(0)()
                    n += 1
        assert not R and not E
        E = epi(P, 0, 96 + 8*(P & 1)) + epi(P, 1, 100 + 8*(P & 1))
    a.stamp(13)
    a("s_nop 7\ns_nop 3")
    if not NT: E = sum([epi(P, mb, FB + (P*2+mb)*4) for P in range(3) for mb in range(2)], [])
    for e in E: e()

def kd(name, vg, acc):
    return """.section .rodata,"a"
.p2align 6
.amdhsa_kernel %s
  .amdhsa_next_free_vgpr %d
  .amdhsa_next_free_sgpr 96
  .amdhsa_accum_offset %d
  .amdhsa_group_segment_fixed_size 0
  .amdhsa_kernarg_size 72
  .amdhsa_user_sgpr_count 2
  .amdhsa_user_sgpr_kernarg_segment_ptr 1
  .amdhsa_system_sgpr_workgroup_id_x 1
.end_amdhsa_kernel
""" % (name, vg, acc)
def head(name): return ".text\n.globl %s\n.p2align 8\n.type %s,@function\n%s:\n" % (name, name, name)
HDR = open("standalone__weight_only_int_quip__prompt.s.ref").read().split("; Override")[0] if len(sys.argv) > 0 else ""

FD, FT, FX = FL + 0x8000, FL + 0x10000, FL + 0x18000
SPIN = 20000
def poll_issue(a, r, n, soff):
    a("v_min_u32 v%d, %d, v1\nv_lshlrev_b32 v%d, 7, v%d" % (r+2, n-1, r+2, r+2))
    a.vmi("buffer_load_dwordx2 v[%d:%d], v%d, s[24:27], %s offen sc1" % (r, r+1, r+2, soff), "poll%d" % r)
def poll_check(a, r, soff):
    a.wvm("poll%d" % r)
    lp, ok = a.label("spin"), a.label("ok")
    a("s_movk_i32 s63, %d\n%s:" % (SPIN, lp))
    a("v_cmp_ne_u32 vcc, s80, v%d\nv_cmp_ne_u32 s[84:85], s62, v%d\ns_or_b64 vcc, vcc, s[84:85]\ns_cbranch_vccz %s" % (r, r+1, ok))
    a("s_sub_u32 s63, s63, 1\ns_cmp_eq_u32 s63, 0\ns_cbranch_scc1 %s" % ok)
    if a.opt.get("sleep"): a("s_sleep %d" % a.opt["sleep"])
    a("buffer_load_dwordx2 v[%d:%d], v%d, s[24:27], %s offen sc1\ns_waitcnt vmcnt(0)\ns_branch %s\n%s:" % (r, r+1, r+2, soff, lp, ok))
def flag_store(a, soff):
    l = a.label("nf")
    a("s_barrier\ns_cmp_lg_u32 s44, 0\ns_cbranch_scc1 %s" % l)
    a("v_mov_b32 v186, s80\nv_mov_b32 v187, s62\nv_mov_b32 v188, 0\ns_mov_b64 s[84:85], exec\ns_mov_b64 exec, 1")
    a("buffer_store_dwordx2 v[186:187], v188, s[24:27], %s offen sc1\ns_mov_b64 exec, s[84:85]\n%s:" % (soff, l))

NONCE = "s_waitcnt lgkmcnt(0)\ns_mul_i32 s80, s80, 0x9E3779B1\ns_add_u32 s80, s80, 0x7F4A7C15\ns_xor_b32 s62, s80, 0x5bd1e995\ns_mul_i32 s62, s62, 0x85EBCA6B"
def flag_addrs(a):
    y_coords(a)
    a("s_lshl_b32 s60, s81, 9\ns_add_u32 s60, s60, 0x%x" % FX)
    a("s_mul_i32 s61, s49, 3\ns_lshr_b32 s61, s61, 1\ns_lshl_b32 s61, s61, 10\ns_add_u32 s61, s61, 0x%x" % FT)
def gen_persist(opt):
    out = HDR + "; @launch grid=(256,1,1) block=(256,1,1) lds=163840\n"
    out += '.amdgcn_target "amdgcn-amd-amdhsa--gfx950"\n'
    a = Asm(opt); sc = " sc1"
    prologue(a, 256, "L_end")
    a("s_cmp_ge_u32 s46, 24\ns_cbranch_scc1 L_x" if opt.get("mix", 1) else "s_cmp_ge_u32 s45, 6\ns_cbranch_scc1 L_x")
    t_coords(a); stage_d_addr(a); ptrs_ready(a); stage_d_loads(a); a.stamp(10, True); ws_setup(a); t_setup(a)
    vp = opt.get("vpre", 1)
    for st in range(vp): t_vload(a, st)
    flag_addrs(a); stage_d_raddr(a)
    a("s_mul_i32 s59, s47, 3072\ns_add_u32 s59, s59, 0x%x\ns_lshl_b32 s50, s48, 7\ns_add_u32 s58, s59, s50\ns_mul_i32 s50, s44, 768\ns_add_u32 s59, s59, s50" % FD)
    a("s_lshl_b32 s89, s48, 10\ns_lshl_b32 s50, s47, 7\ns_add_u32 s89, s89, s50\ns_add_u32 s89, s89, 0x%x" % FT)
    a(NONCE)
    stage_d_compute(a, sc)
    a.stamp(2)
    vm = opt.get("vmid", 4)
    for st in range(vp, vm): t_vload(a, st)
    a.wvm("dst")
    flag_store(a, "s58"); a.stamp(3)
    vl = opt.get("vlate", 8)
    for st in range(vm, vl): t_vload(a, st)
    poll_issue(a, 180, 6, "s59")
    vd = vl if opt.get("vcut") else RV
    for st in range(vl, vd): t_vload(a, st)
    poll_check(a, 180, "s59")
    a.stamp(4)
    stage_t_main(a, sc, sc, vd, pre_store=lambda: poll_issue(a, 180, 4, "s60"))
    a("s_mov_b32 s58, s89")
    assert a.vm[-4:] == ["poll180", "tst", "tst", "tst"], a.vm
    a("s_branch L_pub\nL_x:"); a.vm = []; a.lg = []
    stage_x(a, sc, pre_store=lambda: poll_issue(a, 180, 4, "s60"))
    a("s_lshl_b32 s58, s47, 9\ns_lshl_b32 s50, s48, 7\ns_add_u32 s58, s58, s50\ns_add_u32 s58, s58, 0x%x" % FX)
    a("L_pub:"); a.stamp(7)
    x0, x1, x2 = opt.get("x0", 0), opt.get("x1", 6), opt.get("x2", 10)
    if x0:
        a("s_mov_b32 s11, s58"); y_setup(a)
        a.vm = ["poll180"] + ["pst"]*3
        a.wvm("poll180")
        a("v_cmp_ne_u32 vcc, s80, v180\nv_cmp_ne_u32 s[84:85], s62, v181\ns_or_b64 vcc, vcc, s[84:85]\ns_cbranch_vccnz L_slow")
        a.stamp(9)
        for ks in range(x0): y_xload(a, ks, sc)
        a.wvm("pst"); a.stamp(8); vm1 = list(a.vm)
        flag_store(a, "s11"); a("s_branch L_merge\nL_slow:")
        a.wall(); a.stamp(8); flag_store(a, "s11"); poll_check(a, 180, "s60"); a.stamp(9)
        for ks in range(x0): y_xload(a, ks, sc)
        assert a.vm == vm1
        a("L_merge:")
    else:
        a.wall(); a.stamp(8)
        flag_store(a, "s58")
        y_setup(a)
        poll_check(a, 180, "s60"); a.stamp(9)
    for ks in range(x0, x1): y_xload(a, ks, sc)
    poll_issue(a, 180, 16, "s61")
    for ks in range(x1, x2): y_xload(a, ks, sc)
    a.stamp(10)
    poll_check(a, 180, "s61"); a.stamp(11)
    stage_y_main(a, sc, x2)
    a("s_or_b32 s50, s2, s44\ns_cmp_lg_u32 s50, 0\ns_cbranch_scc1 L_fin")
    a("s_mov_b32 s60, 0x%x" % FX)
    poll_issue(a, 180, 64, "s60"); a.wall(); poll_check(a, 180, "s60")
    a("v_mov_b32 v186, s80\nv_mov_b32 v188, 0\ns_mov_b32 s60, 0x%x\ns_mov_b64 exec, 1\nbuffer_store_dword v186, v188, s[24:27], s60 offen sc1\ns_mov_b64 exec, -1" % FL)
    a("L_fin:"); a.stamp(14)
    if not opt.get("nowait") or opt.get("stamps"): a.wall()
    write_stamps(a, 0); a("L_end:\ns_endpgm")
    out += head(KN) + a.text() + kd(KN, 192+160, 192)
    return out

if __name__ == "__main__":
    opt = {}
    mode = sys.argv[1]; outp = sys.argv[2]
    for kv in sys.argv[3:]:
        k, v = kv.split("="); opt[k] = int(v) if v.lstrip("-").isdigit() else " " + v.replace("+", " ")
    open(outp, "w").write(globals()["gen_" + mode](opt))
```

```python
import sys
KN = "standalone__weight_only_int_quip__prompt_kernel"
WQ, TF, XF, FL, ST = 0x0, 0x200000, 0x400000, 0x700000, 0x780000
WS_BYTES = 0x800000

class Asm:
    def __init__(s, opt):
        s.L = []; s.vm = []; s.lg = []; s.opt = opt; s.nst = 0; s.uid = 0; s.closed = set()
    def __call__(s, t):
        for x in t.split("\n"):
            x = x.strip()
            if x: s.L.append(x if x.endswith(":") else "    " + x)
    def vmi(s, t, tag):
        assert tag not in s.closed, tag
        s(t); s.vm.append(tag)
    def lgi(s, t, tag): s(t); s.lg.append(tag)
    def _n(s, q, tags):
        idx = [i for i, t in enumerate(q) if t in tags]
        if not idx: return None
        n = len(q) - 1 - max(idx)
        del q[:max(idx) + 1]
        return n
    def wvm(s, *tags):
        s.closed.update(t for t in tags if not t.startswith('poll'))
        n = s._n(s.vm, tags)
        if n is not None: s("s_waitcnt vmcnt(%d)" % min(n, 63))
    def wlg(s, *tags):
        n = s._n(s.lg, tags)
        if n is not None: s("s_waitcnt lgkmcnt(%d)" % min(n, 15))
    def wall(s, vm=True, lg=True):
        s("s_waitcnt" + (" vmcnt(0)" if vm else "") + (" lgkmcnt(0)" if lg else ""))
        if vm: s.vm = []
        if lg: s.lg = []
    def stamp(s, i, early=False):
        if s.opt.get("st0") and i in (9, 10) and not early: return
        if early and not s.opt.get("st0"): return
        if s.opt.get("stamps"):
            s("s_memrealtime s[82:83]"); s.wall(vm=False); s("s_mov_b32 s%d, s82" % (64 + i))
    def label(s, b): s.uid += 1; return "L_%s_%d" % (b, s.uid)
    def text(s): return "\n".join(s.L) + "\n"

def srd(a, d, lo, nbytes):
    a("s_mov_b32 s%d, s%d\ns_and_b32 s%d, s%d, 0xffff\ns_mov_b32 s%d, 0x%x\ns_mov_b32 s%d, 0x20000" % (d, lo, d+1, lo+1, d+2, nbytes, d+3))

def prologue(a, nwg, end):
    a("s_cmp_ge_u32 s2, %d\ns_cbranch_scc1 %s" % (nwg, end))
    if a.opt.get("stamps"):
        for i in range(8): a("s_mov_b64 s[%d:%d], 0" % (64+2*i, 65+2*i))
    a.stamp(0)
    a("s_load_dwordx16 s[4:19], s[0:1], 0\ns_load_dwordx2 s[20:21], s[0:1], 64")
    a("v_lshrrev_b32 v2, 6, v0\nv_and_b32 v1, 63, v0\ns_and_b32 s45, s2, 7\nv_readfirstlane_b32 s44, v2\ns_lshr_b32 s46, s2, 3")
    a("v_lshlrev_b32 v10, 4, v1")
def ptrs_ready(a):
    a.stamp(9, True)
    a("s_waitcnt lgkmcnt(0)")
def ws_setup(a):
    srd(a, 24, 20, WS_BYTES)
    a("s_add_u32 s22, s20, 0x%x\ns_addc_u32 s23, s21, 0\ns_load_dword s80, s[22:23], 0" % FL)

def write_stamps(a, kidx):
    if not a.opt.get("stamps"): return
    a.stamp(15)
    l = a.label("nost")
    a("s_cmp_lg_u32 s44, 0\ns_cbranch_scc1 %s" % l)
    a("s_lshl_b32 s50, s2, 6\ns_add_u32 s50, s50, 0x%x" % (ST + kidx*0x4000))
    a("v_mov_b32 v2, 0")
    for i in range(4):
        for k in range(4): a("v_mov_b32 v%d, s%d" % (4+k, 64+4*i+k))
        a("buffer_store_dwordx4 v[4:7], v2, s[24:27], s50 offen offset:%d\ns_nop 1" % (16*i))
    a("s_waitcnt vmcnt(0)")
    if "pace" in a.opt:
        k = a.opt["pace"]; lp = a.label("pace")
        a("s_cmp_eq_u32 s%d, 0\ns_cselect_b32 s50, s64, s%d\ns_add_u32 s50, s50, 4000\n%s:\ns_sleep 2\ns_memrealtime s[82:83]\ns_waitcnt lgkmcnt(0)\ns_sub_u32 s51, s82, s50\ns_cmp_lt_i32 s51, 0\ns_cbranch_scc1 %s" % (64+k, 64+k, lp, lp))
    a("%s:" % l)

def t_coords(a):
    if a.opt.get("mix", 1):
        a("s_mul_i32 s50, s46, 43\ns_lshr_b32 s50, s50, 8\ns_mul_i32 s51, s50, 6\ns_sub_u32 s51, s46, s51")
        a("s_lshr_b32 s52, s45, 2\ns_lshl_b32 s47, s52, 2\ns_add_u32 s47, s47, s50\ns_and_b32 s48, s45, 3\ns_mul_i32 s48, s48, 6\ns_add_u32 s48, s48, s51")
        r = a.opt.get("rot", 1)
        a({2: "s_mov_b32 s51, 0", 3: "s_and_b32 s51, s51, 1", 4: "s_lshr_b32 s51, s51, 1"}.get(r, "s_lshl_b32 s51, s51, 1"))
        a("s_mul_i32 s91, s50, 3\ns_add_u32 s91, s91, s51\ns_add_u32 s91, s91, s52")
    else:
        a("s_cmp_ge_u32 s45, 3\ns_cselect_b32 s50, 1, 0\ns_mul_i32 s51, s50, 3\ns_sub_u32 s51, s45, s51")
        a("s_lshl_b32 s47, s50, 2\ns_lshr_b32 s52, s46, 3\ns_add_u32 s47, s47, s52")
        a("s_lshl_b32 s48, s51, 3\ns_and_b32 s52, s46, 7\ns_add_u32 s48, s48, s52")
        a("s_and_b32 s50, s47, 3\ns_mul_i32 s50, s50, 3\ns_and_b32 s51, s48, 7\ns_mul_i32 s51, s51, 3\ns_lshr_b32 s51, s51, 1\ns_add_u32 s91, s50, s51")
        if a.opt.get("rot", 1) == 2: a("s_lshr_b32 s51, s47, 2\ns_add_u32 s91, s50, s51")
    a("s_cmp_ge_u32 s91, 12\ns_cselect_b32 s51, 12, 0\ns_sub_u32 s91, s91, s51")
    if not a.opt.get("rot", 1): a("s_mov_b32 s91, 0")
def x_coords(a):
    if a.opt.get("mix", 1):
        a("s_sub_u32 s50, s46, 24\ns_lshr_b32 s51, s50, 2\ns_lshl_b32 s47, s45, 1\ns_add_u32 s47, s47, s51\ns_and_b32 s48, s50, 3")
        a("s_mul_i32 s91, s48, 5\ns_lshr_b32 s91, s91, 1\ns_mul_i32 s51, s51, 5\ns_add_u32 s91, s91, s51\ns_add_u32 s91, s91, s45")
        a("s_cmp_ge_u32 s91, 10\ns_cselect_b32 s51, 10, 0\ns_sub_u32 s91, s91, s51")
    else:
        a("s_sub_u32 s47, s45, 6\ns_lshl_b32 s47, s47, 3\ns_lshr_b32 s50, s46, 2\ns_add_u32 s47, s47, s50\ns_and_b32 s48, s46, 3")
        a("s_mul_i32 s50, s48, 5\ns_lshr_b32 s50, s50, 1\ns_and_b32 s51, s47, 7\ns_add_u32 s91, s50, s51")
    a("s_cmp_ge_u32 s91, 10\ns_cselect_b32 s51, 10, 0\ns_sub_u32 s91, s91, s51")
    if not a.opt.get("xrot", a.opt.get("rot", 1)): a("s_mov_b32 s91, 0")

RV = 10; WR = RV*4096; DL = 8*4096
def stage_d_addr(a):
    a("v_lshrrev_b32 v2, 4, v1\ns_mul_i32 s50, s44, 20\nv_add_u32 v2, s50, v2\nv_and_b32 v3, 15, v1\ns_movk_i32 s53, 6144")
    for p in range(5):
        a("v_add_u32 v4, %d, v2\nv_and_b32 v5, 15, v4\nv_xor_b32 v5, v5, v3\nv_mul_u32_u24 v4, s53, v4\nv_lshl_add_u32 v%d, v5, 4, v4" % (4*p, 152+p))
        if 0 < p < 4: a("v_subrev_u32 v%d, %d, v%d" % (152+p, 1024*p, 152+p))
    a("s_mul_i32 s51, s47, %d\ns_lshl_b32 s52, s48, 8\ns_add_u32 s92, s51, s52" % (80*6144))
    a("s_mul_i32 s57, s44, %d\ns_add_u32 m0, s57, %d" % (WR, DL))
    a("v_and_b32 v157, 48, v1")
    a("s_and_b32 s52, s44, 1\ns_lshl_b32 s52, s52, 6\ns_lshl_b32 s53, s48, 7\ns_add_u32 s52, s52, s53")
    for u in range(3):
        a("s_lshr_b32 s53, s44, 1\ns_add_u32 s53, s53, %d\ns_min_u32 s53, s53, 4\ns_mul_i32 s54, s47, 5\ns_add_u32 s53, s53, s54\ns_lshr_b32 s53, s53, 3" % (2*u))
        a("s_mul_i32 s53, s53, 3072\ns_add_u32 s%d, s53, s52" % (93+u))
def stage_d_loads(a):
    srd(a, 28, 6, 640*1536*4)
    for p in range(5):
        if p == 4: a("s_add_u32 m0, s57, %d\ns_nop 0" % (DL + 4096))
        a.vmi("buffer_load_dwordx4 v%d, s[28:31], s92 offen offset:%d%s lds" % (152+p, 1024*(p & 3) if p < 4 else 0, a.opt.get("qnt", "")), "qw")
    srd(a, 36, 8, 5*1536*2); srd(a, 40, 10, 5*1536*2)
    for u in range(3):
        a.vmi("buffer_load_dwordx4 v[%d:%d], v157, s[36:39], s%d offen" % (128+8*u, 131+8*u, 93+u), "sz")
        a.vmi("buffer_load_dwordx4 v[%d:%d], v157, s[40:43], s%d offen" % (132+8*u, 135+8*u, 93+u), "sz")
def stage_d_raddr(a):
    a("v_and_b32 v11, 15, v1\nv_lshrrev_b32 v12, 4, v1\nv_lshlrev_b32 v12, 1, v12\ns_and_b32 s50, s44, 1\ns_lshl_b32 s50, s50, 3\nv_add_u32 v12, s50, v12\nv_xor_b32 v12, v12, v11")
    a("s_lshr_b32 s50, s44, 1\ns_lshl_b32 s50, s50, 4\nv_add_u32 v11, s50, v11\ns_movk_i32 s51, 3277\ns_mov_b32 s52, %d" % (WR - 5120))
    for u in range(3):
        a("v_add_u32 v13, %d, v11\nv_min_u32 v13, 79, v13\nv_mul_u32_u24 v14, s51, v13\nv_lshrrev_b32 v14, 16, v14\nv_mul_u32_u24 v14, s52, v14\nv_lshl_add_u32 v13, v13, 8, v14" % (32*u))
        a("v_add_u32 v13, %d, v13\nv_lshl_add_u32 v%d, v12, 4, v13\nv_xor_b32 v%d, 16, v%d" % (DL, 152+2*u, 153+2*u, 152+2*u))
    a("s_mul_i32 s50, s47, 5\ns_lshr_b32 s51, s44, 1\ns_add_u32 s50, s50, s51\ns_mul_i32 s50, s50, 48\ns_lshl_b32 s51, s48, 1\ns_add_u32 s50, s50, s51")
    a("s_and_b32 s51, s44, 1\ns_add_u32 s50, s50, s51\ns_lshl_b32 s50, s50, 10\ns_add_u32 s92, s50, %d\ns_add_u32 s93, s92, %d\ns_add_u32 s94, s92, %d" % (WQ, 96*1024, 192*1024))
def stage_d_compute(a, sc):
    def prep(u):
        s0, z0, t = 128+8*u, 132+8*u, 48+16*u
        for k in range(4):
            a("v_lshlrev_b32 v%d, 16, v%d\nv_and_b32 v%d, 0xffff0000, v%d" % (t+2*k, s0+k, t+2*k+1, s0+k))
            a("v_lshlrev_b32 v%d, 16, v%d\nv_and_b32 v%d, 0xffff0000, v%d" % (t+8+2*k, z0+k, t+8+2*k+1, z0+k))
        for k in range(0, 8, 2):
            a("v_pk_mul_f32 v[%d:%d], v[%d:%d], v[%d:%d] neg_lo:[1,0] neg_hi:[1,0]" % (t+8+k, t+9+k, t+8+k, t+9+k, t+k, t+k+1))
    a.wvm("qw", "sz"); prep(0); a("s_barrier"); a.stamp(1)
    for u in range(3):
        q = 16 + 8*u
        a.lgi("ds_read_b128 v[%d:%d], v%d" % (q, q+3, 152+2*u), "dq%d" % u)
        a.lgi("ds_read_b128 v[%d:%d], v%d" % (q+4, q+7, 153+2*u), "dq%d" % u)
    skip = a.label("dskip")
    for u in range(3):
        q = 16 + 8*u; t = 48+16*u; o = 100 + 4*u
        if u == 2: a.wlg("dq2"); a("s_cmp_ge_u32 s44, 2\ns_cbranch_scc1 %s" % skip)
        if u: prep(u)
        a.wlg("dq%d" % u)
        for k in range(8): a("v_cvt_f32_i32 v%d, v%d" % (q+k, q+k))
        for k in range(0, 8, 2): a("v_pk_fma_f32 v[%d:%d], v[%d:%d], v[%d:%d], v[%d:%d]" % (q+k, q+k+1, q+k, q+k+1, t+k, t+k+1, t+8+k, t+9+k))
        for k in range(4): a("v_cvt_pk_bf16_f32 v%d, v%d, v%d" % (o+k, q+2*k, q+2*k+1))
        a("buffer_store_dwordx4 v[%d:%d], v10, s[24:27], s%d offen%s" % (o, o+3, 92+u, sc))
        if u < 2: a.vm.append("dst")
    a("%s:" % skip)

def t_setup(a):
    srd(a, 32, 14, 1536*1536*2)
    a("v_lshrrev_b32 v6, 3, v1\nv_and_b32 v7, 7, v1\nv_lshrrev_b32 v8, 2, v1\nv_and_b32 v8, 4, v8\nv_xor_b32 v7, v7, v8")
    a("s_movk_i32 s50, 3072\nv_mul_u32_u24 v6, s50, v6\nv_lshl_add_u32 v2, v7, 4, v6")
    for p in range(1, 4): a("v_add_u32 v%d, %d, v2" % (2+p, p*(24576-1024)))
    a("v_lshrrev_b32 v11, 4, v1\nv_lshlrev_b32 v11, 3, v11\nv_bfe_u32 v12, v1, 2, 2\nv_add_u32 v11, v11, v12\nv_lshlrev_b32 v11, 7, v11")
    a("v_and_b32 v12, 3, v1\nv_lshrrev_b32 v13, 1, v1\nv_and_b32 v13, 4, v13\nv_xor_b32 v12, v12, v13\nv_lshl_add_u32 v11, v12, 4, v11")
    a("s_mov_b32 s53, s57")
    for b in range(4):
        a("s_add_u32 s50, s44, %d\ns_and_b32 s51, s50, 1\ns_lshl_b32 s51, s51, 3\ns_add_u32 s51, s51, s53\ns_and_b32 s50, s50, 2\ns_lshl_b32 s50, s50, 5" % b)
        a("v_xor_b32 v%d, s50, v11\nv_add_u32 v%d, s51, v%d" % (6+b, 6+b, 6+b))
    a("s_mul_i32 s55, s44, %d\ns_lshl_b32 s50, s48, 7\ns_add_u32 s55, s55, s50" % (12*32*3072))
    a("s_mul_i32 s56, s47, %d\ns_mul_i32 s50, s44, %d\ns_add_u32 s56, s56, s50\ns_add_u32 s56, s56, %d" % (5*48*1024, 12*1024, WQ))
    a("s_mov_b32 s50, s91")
    a("s_mul_i32 s86, s50, 98304\ns_add_u32 s86, s86, s55\ns_add_u32 s87, s55, %d\ns_lshl_b32 s88, s50, 10\ns_add_u32 s88, s88, s56\ns_add_u32 s90, s56, 12288" % (12*98304))
def t_vload1(a, s, p, setm0=True):
    if p == 0 and s > 0: a("s_add_u32 s86, s86, 98304\ns_cmp_eq_u32 s86, s87\ns_cselect_b32 s86, s55, s86")
    if setm0: a("s_add_u32 m0, s57, %d\ns_nop 0" % ((s % RV)*4096))
    a.vmi("buffer_load_dwordx4 v%d, s[32:35], s86 offen offset:%d%s lds" % (2+p, 1024*p, a.opt.get("vnt", "")), "V%d" % s)
def t_vload(a, s):
    for p in range(4): t_vload1(a, s, p, p == 0)
def t_aload1(a, s, b, sc):
    NA = a.opt.get("na", 4)
    r = (s % NA)*20 + 4*b
    if a.opt.get("adiag") and s >= NA: return
    if b == 0 and s > 0: a("s_add_u32 s88, s88, 1024\ns_cmp_eq_u32 s88, s90\ns_cselect_b32 s88, s56, s88")
    if b: a("s_add_u32 s50, s88, %d" % (b*48*1024))
    a.vmi("buffer_load_dwordx4 a[%d:%d], v10, s[24:27], %s offen%s" % (r, r+3, "s50" if b else "s88", sc), "A%d" % s)
def a_touch_addr(a):
    at = a.opt["at"]; skip = max(0, (12-at)*40 - 384)
    a("s_mul_i32 s50, s46, 43\ns_lshr_b32 s50, s50, 8\ns_mul_i32 s50, s50, 6\ns_sub_u32 s50, s46, s50\ns_lshl_b32 s50, s50, 6\ns_add_u32 s50, s50, %d" % (at*40))
    a("v_add_u32 v184, s50, v1\nv_min_u32 v184, 479, v184\ns_movk_i32 s50, 1639\nv_mul_u32_u24 v185, s50, v184\nv_lshrrev_b32 v185, 16, v185\nv_mul_u32_u24 v183, 40, v185\nv_sub_u32 v184, v184, v183")
    a("v_add_u32 v185, s91, v185\nv_subrev_u32 v183, 12, v185\nv_min_u32 v185, v185, v183\nv_lshlrev_b32 v185, 10, v185")
    a("v_lshrrev_b32 v183, 3, v184\nv_and_b32 v184, 7, v184\nv_lshl_add_u32 v185, v184, 7, v185\ns_mov_b32 s50, 49152\nv_mul_u32_u24 v183, s50, v183\nv_add_u32 v185, v185, v183")
def t_bread(a, s, b, t):
    r = 96 + (s & 1)*16 + 4*b + 2*t
    a.lgi("ds_read_b64_tr_b16 v[%d:%d], v%d offset:%d" % (r, r+1, 6+b, (s % RV)*4096 + t*512), "B%d" % s)
def stage_t_main(a, ldsc, stsc, vdone, pre_store=None):
    ACC = 16
    NA = a.opt.get("na", 4)
    vin = a.opt.get("vin", 0)
    for s in range(RV):
        if s >= vdone and (not vin or s < a.opt.get("vmin", 0)): t_vload(a, s)
        if s == a.opt.get("at", -1): a.vmi("buffer_load_dword v184, v185, s[24:27], s56 offen%s" % ldsc, "at")
        if s < NA:
            for b in range(5): t_aload1(a, s, b, ldsc)
    a.wvm("V0")
    for b in range(4):
        for t in range(2): t_bread(a, 0, b, t)
    vq = [(s, p) for s in range(max(vdone, a.opt.get('vmin', 0)) if vin else RV, 12) for p in range(4)]
    a("v_add_u32 v11, s57, v10")
    for b in range(1, 4):
        a("s_sub_u32 s50, s44, %d\ns_and_b32 s50, s50, 3\ns_mul_i32 s50, s50, %d\ns_add_u32 s50, s50, %d\nv_add_u32 v%d, s50, v10" % (b, WR, (b-1)*5120, 11+b))
    for s in range(12):
        a.wvm("A%d" % s, "V%d" % (s+1)); a.wlg("B%d" % s)
        if s == 0: a.stamp(5)
        order = [(b, db) for db in range(5) for b in range(4)] if s < 11 else [(b, db) for b in (1, 2, 3, 0) for db in range(5)]
        for n, (b, db) in enumerate(order):
            c = ACC + (b*5+db)*4; ar = (s % NA)*20 + 4*db; br = 96 + (s & 1)*16 + 4*b
            a("v_mfma_f32_16x16x32_bf16 v[%d:%d], a[%d:%d], v[%d:%d], %s" % (c, c+3, ar, ar+3, br, br+3, "0" if s == 0 else "v[%d:%d]" % (c, c+3)))
            if s+1 < 12 and n < 16 and (n & 1) == 0: t_bread(a, s+1, n >> 2, (n >> 1) & 1)
            if b == 3 and s + NA < 12: t_aload1(a, s+NA, db, ldsc)
            if b == 1 and db in ((0, 1, 2, 3) if vin == 1 else (0, 1, 2, 3, 4) if vin else (1, 3)) and vq and vq[0][0] - RV <= s: t_vload1(a, *vq.pop(0))
            if s == 11 and n >= 8:
                wb, wd = order[n-8]; c = ACC + (wb*5+wd)*4
                a.lgi("ds_write_b128 v11, v[%d:%d] offset:%d" % (c, c+3, (wb-1)*5120 + wd*1024), "rw")
    assert not vq
    a("s_nop 1")
    for wb, wd in order[12:15]:
        c = ACC + (wb*5+wd)*4
        a.lgi("ds_write_b128 v11, v[%d:%d] offset:%d" % (c, c+3, (wb-1)*5120 + wd*1024), "rw")
    a.wall(vm=False); a("s_barrier")
    a.stamp(6)
    for db in range(5):
        for b in range(3):
            r = 36 + (db*3+b)*4
            a.lgi("ds_read_b128 v[%d:%d], v%d offset:%d" % (r, r+3, 12+b, db*1024), "rr%d" % db)
    if pre_store: pre_store()
    a("s_lshl_b32 s50, s48, 2\ns_add_u32 s50, s50, s44\ns_mul_i32 s50, s50, 20\ns_lshr_b32 s51, s47, 1\ns_mul_i32 s51, s51, 5\ns_add_u32 s50, s50, s51")
    a("s_lshl_b32 s50, s50, 10\ns_add_u32 s50, s50, %d\ns_and_b32 s51, s47, 1\ns_lshl_b32 s52, s51, 11\ns_add_u32 s52, s52, s50" % TF)
    a("s_lshl_b32 s51, s51, 9\ns_add_u32 s51, s51, s50\ns_add_u32 s51, s51, 4096\nv_lshlrev_b32 v3, 3, v1")
    for db in range(5):
        a.wlg("rr%d" % db)
        c = ACC + db*4; r = 36 + db*12
        for k in range(0, 4, 2):
            a("v_pk_add_f32 v[%d:%d], v[%d:%d], v[%d:%d]" % (c+k, c+k+1, c+k, c+k+1, r+k, r+k+1))
            a("v_pk_add_f32 v[%d:%d], v[%d:%d], v[%d:%d]" % (r+4+k, r+5+k, r+4+k, r+5+k, r+8+k, r+9+k))
        for k in range(0, 4, 2):
            a("v_pk_add_f32 v[%d:%d], v[%d:%d], v[%d:%d]" % (c+k, c+k+1, c+k, c+k+1, r+4+k, r+5+k))
        o = 96 + 2*db
        a("v_cvt_pk_bf16_f32 v%d, v%d, v%d\nv_cvt_pk_bf16_f32 v%d, v%d, v%d" % (o, c, c+1, o+1, c+2, c+3))
        if db in (1, 3): a.vmi("buffer_store_dwordx4 v[%d:%d], v10, s[24:27], s52 offen offset:%d%s" % (o-2, o+1, (db >> 1)*1024, stsc), "tst")
        if db == 4: a.vmi("buffer_store_dwordx2 v[%d:%d], v3, s[24:27], s51 offen%s" % (o, o+1, stsc), "tst")

XS = 36864
def stage_x(a, stsc, pre_store=None):
    x_coords(a)
    a("s_movk_i32 s53, 1280\nv_lshrrev_b32 v11, 3, v1\ns_lshl_b32 s50, s44, 5\nv_add_u32 v11, s50, v11\nv_and_b32 v12, 7, v1\nv_lshrrev_b32 v13, 4, v1")
    for p in range(4):
        a("v_add_u32 v14, %d, v13\nv_and_b32 v14, 7, v14\nv_xor_b32 v14, v14, v12\nv_add_u32 v15, %d, v11\nv_mul_u32_u24 v15, s53, v15" % (4*p, 8*p))
        a("v_lshl_add_u32 v%d, v14, 4, v15" % (2+p))
        if p: a("v_subrev_u32 v%d, %d, v%d" % (2+p, 1024*p, 2+p))
    a("s_movk_i32 s54, 3277\ns_lshl_b32 s50, s44, 4")
    UR = [6, 7, 8, 9, 11]
    for p in range(5):
        a("v_add_u32 v12, %d, v1\nv_mul_u32_u24 v13, s54, v12\nv_lshrrev_b32 v13, 16, v13\nv_mul_u32_u24 v14, 20, v13\nv_sub_u32 v12, v12, v14" % (64*p))
        a("v_lshrrev_b32 v14, 2, v13\nv_and_b32 v14, 2, v14\nv_xor_b32 v12, v12, v14\nv_add_u32 v13, s50, v13\nv_mul_u32_u24 v13, s53, v13\nv_lshl_add_u32 v%d, v12, 4, v13" % UR[p])
        if 0 < p < 4: a("v_subrev_u32 v%d, %d, v%d" % (UR[p], 1024*p, UR[p]))
    a("s_mul_i32 s55, s47, %d\ns_mul_i32 s56, s48, 320\ns_lshl_b32 s57, s44, 12\ns_mul_i32 s58, s44, 5120\ns_add_u32 s58, s58, 16384" % (128*1280))
    a("s_mov_b32 s50, s91")
    a("s_lshl_b32 s86, s50, 7\ns_add_u32 s86, s86, s55\ns_add_u32 s87, s55, 1280\ns_mul_i32 s88, s50, 81920\ns_add_u32 s88, s88, s56\ns_add_u32 s90, s56, 819200")
    def dma1(st, i):
        sl = (st % 4)*XS
        if i < 4:
            if i == 0 and st > 0: a("s_add_u32 s86, s86, 128\ns_cmp_eq_u32 s86, s87\ns_cselect_b32 s86, s55, s86")
            a("s_add_u32 m0, s57, %d\ns_nop 0" % sl)
            a.vmi("buffer_load_dwordx4 v%d, s[28:31], s86 offen offset:%d%s lds" % (2+i, 1024*i, a.opt.get("xnt", "")), "S%d" % st)
        else:
            p = i - 4
            if p == 0 and st > 0: a("s_add_u32 s88, s88, 81920\ns_cmp_eq_u32 s88, s90\ns_cselect_b32 s88, s56, s88")
            a("s_add_u32 m0, s58, %d\ns_nop 0" % (sl + (4096 if p == 4 else 0)))
            a.vmi("buffer_load_dwordx4 v%d, s[32:35], s88 offen offset:%d%s lds" % (UR[p], 1024*(p & 3) if p < 4 else 0, a.opt.get("unt", "")), "S%d" % st)
    def dma(st):
        for i in range(9): dma1(st, i)
    ptrs_ready(a); srd(a, 28, 4, 2048*640*2); srd(a, 32, 12, 640*640*2)
    XP = a.opt.get('xpre', 2)
    for st in range(XP): dma(st)
    a.stamp(10, True)
    dq = [(st, i) for st in range(XP, 10) for i in range(9)]
    free = 4
    ws_setup(a); flag_addrs(a)
    a("v_and_b32 v12, 15, v1\nv_lshrrev_b32 v13, 4, v1\nv_lshrrev_b32 v14, 1, v12\nv_xor_b32 v14, v14, v13\ns_lshr_b32 s50, s44, 1\ns_lshl_b32 s50, s50, 13")
    a("v_lshlrev_b32 v12, 7, v12\nv_lshl_add_u32 v12, v14, 4, v12\nv_add_u32 v176, s50, v12\nv_xor_b32 v177, 64, v176")
    a("v_add_u32 v178, %d, v176\nv_add_u32 v179, %d, v177" % (2*XS, 2*XS))
    a("v_lshlrev_b32 v12, 3, v13\nv_bfe_u32 v14, v1, 2, 2\nv_add_u32 v12, v12, v14\ns_movk_i32 s50, 320\nv_mul_u32_u24 v12, s50, v12\nv_and_b32 v14, 3, v1\nv_lshl_add_u32 v12, v14, 3, v12")
    a("s_and_b32 s50, s44, 1\ns_mul_i32 s51, s50, 160\ns_add_u32 s51, s51, 16384\nv_add_u32 v12, s51, v12\nv_and_b32 v13, 1, v13\nv_lshlrev_b32 v13, 5, v13")
    a("s_lshl_b32 s50, s50, 1\ns_sub_u32 s50, 1, s50\nv_mul_lo_u32 v13, v13, s50\nv_add_u32 v180, v12, v13\nv_sub_u32 v181, v12, v13")
    a("v_add_u32 v182, %d, v180\nv_add_u32 v183, %d, v181" % (2*XS, 2*XS))
    ACC = 16; FB = 96
    def reads(u):
        st, k = u >> 1, u & 1; sl = st % 4; hi = (sl >> 1)*2; lo = (sl & 1)*XS; fb = FB + 36*(u & 1)
        R = []
        for i in range(5):
            if i < 4: R.append("ds_read_b128 v[%d:%d], v%d offset:%d" % (fb+4*i, fb+4*i+3, 176+hi+k, lo + i*2048))
            for t in range(2):
                r = fb + 16 + 4*i + 2*t
                R.append("ds_read_b64_tr_b16 v[%d:%d], v%d offset:%d" % (r, r+1, 180+hi+(i & 1), lo + (32*k+4*t)*320 + 32*i))
        return R
    a(NONCE); a.wvm("S0"); a("s_barrier")
    a.stamp(1)
    for r in reads(0): a.lgi(r, "F0")
    for u in range(20):
        a.wlg("F%d" % u)
        R = reads(u+1) if u < 19 else []
        fb = FB + 36*(u & 1); n = 0
        for eb in range(5):
            for mb in range(4):
                c = ACC + (eb*4+mb)*4; ar = fb + 16 + 4*eb; br = fb + 4*mb
                a("v_mfma_f32_16x16x32_bf16 v[%d:%d], v[%d:%d], v[%d:%d], %s" % (c, c+3, ar, ar+3, br, br+3, "0" if u == 0 else "v[%d:%d]" % (c, c+3)))
                if n == 1 and (u & 1) and u < 19:
                    st = u >> 1
                    a.wvm("S%d" % (st+1)); a("s_nop 0" if a.opt.get("xnobar") else "s_barrier"); free = st + 5
                if n >= 1 and R:
                    r = R.pop(0)
                    if not a.opt.get("xnoread"): a.lgi(r, "F%d" % (u+1))
                if n % a.opt.get('xev', 4) == a.opt.get('xev', 4) - 1 and dq and dq[0][0] < free:
                    d = dq.pop(0)
                    if not a.opt.get("xnodma"): dma1(*d)
                n += 1
        assert not R
    a.stamp(6)
    assert not dq
    if pre_store: pre_store()
    a("s_lshl_b32 s50, s47, 3\ns_lshr_b32 s51, s44, 1\ns_lshl_b32 s51, s51, 2\ns_add_u32 s50, s50, s51\ns_mul_i32 s50, s50, 20\ns_mul_i32 s51, s48, 5\ns_add_u32 s50, s50, s51")
    a("s_lshl_b32 s50, s50, 10\ns_add_u32 s50, s50, %d\ns_and_b32 s51, s44, 1\ns_lshl_b32 s52, s51, 11\ns_add_u32 s52, s52, s50" % XF)
    a("s_lshl_b32 s51, s51, 9\ns_add_u32 s51, s51, s50\ns_add_u32 s51, s51, 4096\nv_lshlrev_b32 v3, 3, v1\ns_nop 3")
    for mb in range(4):
        o = 96 + 12*mb
        for eb in range(5):
            c = ACC + (eb*4+mb)*4
            a("v_cvt_pk_bf16_f32 v%d, v%d, v%d\nv_cvt_pk_bf16_f32 v%d, v%d, v%d" % (o+2*eb, c, c+1, o+2*eb+1, c+2, c+3))
            if eb in (1, 3): a.vmi("buffer_store_dwordx4 v[%d:%d], v10, s[24:27], s52 offen offset:%d%s" % (o+2*eb-2, o+2*eb+1, (eb >> 1)*1024, stsc), "xst")
            if eb == 4: a.vmi("buffer_store_dwordx2 v[%d:%d], v3, s[24:27], s51 offen%s" % (o+8, o+9, stsc), "xst")
        if mb < 3: a("s_add_u32 s52, s52, 20480\ns_add_u32 s51, s51, 20480")

def y_coords(a):
    a("s_lshr_b32 s81, s45, 1\ns_lshl_b32 s81, s81, 2\ns_lshr_b32 s50, s46, 3\ns_add_u32 s81, s81, s50")
    a("s_and_b32 s49, s45, 1\ns_lshl_b32 s49, s49, 3\ns_and_b32 s50, s46, 7\ns_add_u32 s49, s49, s50")
def y_setup(a):
    a("s_mov_b32 s47, s81\ns_mov_b32 s48, s49")
    srd(a, 28, 16, 2048*1536*2)
    a("v_lshlrev_b32 v11, 3, v1\nv_add_u32 v12, 4096, v11\nv_add_u32 v13, 61440, v10\nv_add_u32 v14, 61440, v11")
    a("s_lshl_b32 s55, s47, 3\ns_lshl_b32 s50, s44, 1\ns_add_u32 s55, s55, s50\ns_mul_i32 s55, s55, 20480\ns_add_u32 s55, s55, %d" % XF)
    a("s_mul_i32 s56, s48, 122880\ns_add_u32 s56, s56, %d" % TF)
    for i in range(3):
        a("s_mul_i32 s50, s44, 3\ns_add_u32 s50, s50, %d\ns_and_b32 s51, s50, 1\ns_lshr_b32 s50, s50, 1\ns_mul_i32 s50, s50, 20480\ns_lshl_b32 s51, s51, 10\ns_add_u32 s%d, s50, s51" % (i, 57+i))
def y_xload1(a, ks, mb, sc):
    G, r = divmod(ks, 5)
    d = (ks*2+mb)*4
    a("s_add_u32 s50, s55, %d" % (mb*20480 + G*5120))
    if r < 4: a.vmi("buffer_load_dwordx4 a[%d:%d], v10, s[24:27], s50 offen offset:%d%s" % (d, d+3, r*1024, sc), "X%d" % ks)
    else:
        for h in range(2): a.vmi("buffer_load_dwordx2 a[%d:%d], v12, s[24:27], s50 offen offset:%d%s" % (d+2*h, d+2*h+1, h*512, sc), "X%d" % ks)
def y_xload(a, ks, sc):
    for mb in range(2): y_xload1(a, ks, mb, sc)
def y_tload1(a, st, i, sc):
    a("s_add_u32 m0, s%d, %d\ns_add_u32 s50, s56, m0" % (57+i, st*2048))
    a.vmi("buffer_load_dwordx4 v10, s[24:27], s50 offen%s lds" % sc, "T%d" % st)
def stage_y_main(a, sc, xdone, early=None):
    ACC = 16; FB = 64
    NT = a.opt.get("ytail", 0); K0 = 20 - NT
    q = [(min(2*st, K0) - 1.5, lambda st=st, i=i: y_tload1(a, st, i, sc)) for st in range(10) for i in range(3)]
    q += [(min(ks, K0) - a.opt.get("xlead", 0), lambda ks=ks, mb=mb: y_xload1(a, ks, mb, sc)) for ks in range(xdone, 20) for mb in range(2)]
    q = [f for d, f in sorted(q, key=lambda e: e[0])]
    for i in range(a.opt.get("ypre", 6)): q.pop(0)()
    ev = a.opt.get("yev", 4)
    def rd(r, nb, ks): return "ds_read_b128 v[%d:%d], v%d offset:%d" % (r, r+3, 10 if nb < 3 else 13, (nb % 3)*20480 + ks*1024)
    def rd2(r, nb, ks):
        if ks % 5 < 4: return [rd(r, nb, ks)]
        return ["ds_read_b64 v[%d:%d], v%d offset:%d" % (r+2*h, r+2*h+1, 11 if nb < 3 else 14, (nb % 3)*20480 + ks*1024 + 512*h) for h in range(2)]
    def reads(ks): return [rd2(FB + 24*(ks & 1) + 4*nb, nb, ks) for nb in range(6)]
    def tb(P): return 112 + 8*NT*(P & 1)
    def treads(P): return [rd2(tb(P) + 4*(2*j+sub), 2*P+sub, K0+j) for j in range(NT) for sub in range(2)]
    def epi_addr():
        a("v_and_b32 v2, 15, v1\nv_lshrrev_b32 v3, 4, v1\ns_movk_i32 s52, 3072\nv_mul_u32_u24 v2, s52, v2\nv_lshl_add_u32 v2, v3, 4, v2")
        a("s_lshl_b32 s52, s47, 2\ns_add_u32 s52, s52, s44\ns_mul_i32 s52, s52, %d\ns_mul_i32 s53, s48, 192\ns_add_u32 s52, s52, s53\ns_add_u32 s53, s52, %d" % (32*3072, 16*3072))
    def epi(P, mb, o):
        E = []
        for sub in range(2):
            c = ACC + ((2*P+sub)*2+mb)*4
            E.append(lambda c=c, sub=sub: a("v_cvt_pk_bf16_f32 v%d, v%d, v%d\nv_cvt_pk_bf16_f32 v%d, v%d, v%d" % (o+2*sub, c, c+1, o+2*sub+1, c+2, c+3)))
        E.append(lambda: a.vmi("buffer_store_dwordx4 v[%d:%d], v2, s[28:31], s%d offen offset:%d%s" % (o, o+3, 52+mb, 64*P, a.opt.get("ysc", "")), "yst"))
        return E
    def mfma(nb, mb, ar, ks):
        c = ACC + (nb*2+mb)*4; br = (ks*2+mb)*4
        a("v_mfma_f32_16x16x32_bf16 v[%d:%d], v[%d:%d], a[%d:%d], %s" % (c, c+3, ar, ar+3, br, br+3, "0" if ks == 0 else "v[%d:%d]" % (c, c+3)))
    epi_addr()
    a.wvm("T0"); a("s_barrier")
    a.stamp(12)
    for rr in reads(0):
        for r in rr: a.lgi(r, "F0")
    for ks in range(K0):
        a.wvm("X%d" % ks); a.wlg("F%d" % ks)
        R = reads(ks+1) if ks < K0-1 else treads(0) if NT else []
        fb = FB + 24*(ks & 1); n = 0
        for nb in range(6):
            for mb in range(2):
                mfma(nb, mb, fb + 4*nb, ks)
                if n == 1 and (ks & 1) and ks < 19:
                    a.wvm(*["T%d" % t for t in (range((ks >> 1)+1, 10) if ks == K0-1 else [(ks >> 1)+1])]); a("s_barrier")
                if ks == 2 and n == 8 and early: early()
                if n >= 1 and R:
                    for r in R.pop(0): a.lgi(r, "F%d" % (ks+1))
                if n % ev == ev - 1 and q: q.pop(0)()
                n += 1
        assert not R
    assert not q
    E = []
    for P in range(3 if NT else 0):
        if P == 0: a.wvm(*["X%d" % k for k in range(K0, 20)])
        a.wlg("F%d" % (K0+P))
        R = treads(P+1) if P < 2 else []
        n = 0
        for j in range(NT):
            for sub in range(2):
                for mb in range(2):
                    mfma(2*P+sub, mb, tb(P) + 4*(2*j+sub), K0+j)
                    if R and n % 2 == 0:
                        for r in R.pop(0): a.lgi(r, "F%d" % (K0+P+1))
                    if n >= 2 and E: E.pop(0)()
                    n += 1
        assert not R and not E
        E = epi(P, 0, 96 + 8*(P & 1)) + epi(P, 1, 100 + 8*(P & 1))
    a.stamp(13)
    a("s_nop 7\ns_nop 3")
    if not NT: E = sum([epi(P, mb, FB + (P*2+mb)*4) for P in range(3) for mb in range(2)], [])
    for e in E: e()

def kd(name, vg, acc):
    return """.section .rodata,"a"
.p2align 6
.amdhsa_kernel %s
  .amdhsa_next_free_vgpr %d
  .amdhsa_next_free_sgpr 102
  .amdhsa_accum_offset %d
  .amdhsa_group_segment_fixed_size 0
  .amdhsa_kernarg_size 72
  .amdhsa_user_sgpr_count 2
  .amdhsa_user_sgpr_kernarg_segment_ptr 1
  .amdhsa_system_sgpr_workgroup_id_x 1
.end_amdhsa_kernel
""" % (name, vg, acc)
def head(name): return ".text\n.globl %s\n.p2align 8\n.type %s,@function\n%s:\n" % (name, name, name)
HDR = open("standalone__weight_only_int_quip__prompt.s.ref").read().split("; Override")[0] if len(sys.argv) > 0 else ""

FD, FT, FX = FL + 0x8000, FL + 0x10000, FL + 0x18000
SPIN = 20000
def poll_issue(a, r, n, soff):
    a("v_min_u32 v%d, %d, v1\nv_lshlrev_b32 v%d, 7, v%d" % (r+2, n-1, r+2, r+2))
    a.vmi("buffer_load_dwordx2 v[%d:%d], v%d, s[24:27], %s offen sc1" % (r, r+1, r+2, soff), "poll%d" % r)
def poll_check(a, r, soff):
    a.wvm("poll%d" % r)
    lp, ok = a.label("spin"), a.label("ok")
    a("s_movk_i32 s63, %d\n%s:" % (SPIN, lp))
    a("v_cmp_ne_u32 vcc, s80, v%d\nv_cmp_ne_u32 s[84:85], s62, v%d\ns_or_b64 vcc, vcc, s[84:85]\ns_cbranch_vccz %s" % (r, r+1, ok))
    a("s_sub_u32 s63, s63, 1\ns_cmp_eq_u32 s63, 0\ns_cbranch_scc1 %s" % ok)
    if a.opt.get("sleep"): a("s_sleep %d" % a.opt["sleep"])
    a("buffer_load_dwordx2 v[%d:%d], v%d, s[24:27], %s offen sc1\ns_waitcnt vmcnt(0)\ns_branch %s\n%s:" % (r, r+1, r+2, soff, lp, ok))
def flag_store(a, soff):
    l = a.label("nf")
    a("s_barrier\ns_cmp_lg_u32 s44, 0\ns_cbranch_scc1 %s" % l)
    a("v_mov_b32 v186, s80\nv_mov_b32 v187, s62\nv_mov_b32 v188, 0\ns_mov_b64 s[84:85], exec\ns_mov_b64 exec, 1")
    a("buffer_store_dwordx2 v[186:187], v188, s[24:27], %s offen sc1\ns_mov_b64 exec, s[84:85]\n%s:" % (soff, l))

NONCE = "s_waitcnt lgkmcnt(0)\ns_mul_i32 s80, s80, 0x9E3779B1\ns_add_u32 s80, s80, 0x7F4A7C15\ns_xor_b32 s62, s80, 0x5bd1e995\ns_mul_i32 s62, s62, 0x85EBCA6B"
def flag_addrs(a):
    y_coords(a)
    a("s_lshl_b32 s60, s81, 9\ns_add_u32 s60, s60, 0x%x" % FX)
    a("s_mul_i32 s61, s49, 3\ns_lshr_b32 s61, s61, 1\ns_lshl_b32 s61, s61, 10\ns_add_u32 s61, s61, 0x%x" % FT)
def x_touch(a, what):
    a("s_lshl_b32 s50, s46, 2\ns_add_u32 s50, s50, s44\ns_lshl_b32 s50, s50, 13\nv_lshlrev_b32 v189, 7, v1")
    if what & 1:
        srd(a, 96, 12, 640*640*2)
        a.vmi("buffer_load_dword v190, v189, s[96:99], s50 offen", "xt")
    if what & 2:
        srd(a, 96, 4, 2048*640*2)
        a("s_mul_i32 s51, s45, 327680\ns_min_u32 s50, s50, %d\ns_add_u32 s50, s50, s51" % (39*8192))
        l = a.label("nt")
        a("s_cmp_ge_u32 s46, 10\ns_cbranch_scc1 %s\nbuffer_load_dword v191, v189, s[96:99], s50 offen\n%s:" % (l, l))
def gen_persist(opt):
    out = HDR + "; @launch grid=(256,1,1) block=(256,1,1) lds=163840\n"
    out += '.amdgcn_target "amdgcn-amd-amdhsa--gfx950"\n'
    a = Asm(opt); sc = " sc1"
    prologue(a, 256, "L_end")
    a("s_cmp_ge_u32 s46, 24\ns_cbranch_scc1 L_x" if opt.get("mix", 1) else "s_cmp_ge_u32 s45, 6\ns_cbranch_scc1 L_x")
    t_coords(a); stage_d_addr(a); ptrs_ready(a); stage_d_loads(a); a.stamp(10, True); ws_setup(a); t_setup(a)
    vp = opt.get("vpre", 1)
    if opt.get("xtp") == 0: x_touch(a, opt["xt"])
    for st in range(vp): t_vload(a, st)
    flag_addrs(a); stage_d_raddr(a)
    if "at" in opt: a_touch_addr(a)
    a("s_mul_i32 s59, s47, 3072\ns_add_u32 s59, s59, 0x%x\ns_lshl_b32 s50, s48, 7\ns_add_u32 s58, s59, s50\ns_mul_i32 s50, s44, 768\ns_add_u32 s59, s59, s50" % FD)
    a("s_lshl_b32 s89, s48, 10\ns_lshl_b32 s50, s47, 7\ns_add_u32 s89, s89, s50\ns_add_u32 s89, s89, 0x%x" % FT)
    a(NONCE)
    stage_d_compute(a, sc)
    a.stamp(2)
    if opt.get("xtp") == 1: x_touch(a, opt["xt"])
    vm = opt.get("vmid", 4)
    for st in range(vp, vm): t_vload(a, st)
    a.wvm("dst")
    flag_store(a, "s58"); a.stamp(3)
    if opt.get("xtp") == 2: x_touch(a, opt["xt"])
    vl = opt.get("vlate", 8)
    for st in range(vm, vl): t_vload(a, st)
    ch = opt.get("ch", 0)
    if ch:
        ent = []
        for c in range(vl, RV, ch):
            poll_issue(a, 180, 6, "s59")
            for st in range(c, c+ch): t_vload(a, st)
            a.wvm("poll180")
            if c + ch >= RV: break
            a("v_cmp_ne_u32 vcc, s80, v180\nv_cmp_ne_u32 s[84:85], s62, v181\ns_or_b64 vcc, vcc, s[84:85]\ns_cbranch_vccz L_t%d" % (c+ch))
            ent.append((c+ch, list(a.vm), set(a.closed)))
        poll_check(a, 180, "s59")
        ent = [(RV, list(a.vm), set(a.closed))] + ent
        for i, (vd, vm, cl) in enumerate(ent):
            a.vm, a.closed, a.lg = vm, cl, []
            if i: a("L_t%d:" % vd)
            a.stamp(4)
            stage_t_main(a, sc, sc, vd, pre_store=lambda: poll_issue(a, 180, 4, "s60"))
            assert a.vm[-4:] == ["poll180", "tst", "tst", "tst"], a.vm
            if i + 1 < len(ent): a("s_mov_b32 s58, s89\ns_branch L_pub")
    else:
        poll_issue(a, 180, 6, "s59")
        vd = vl if opt.get("vcut") else RV
        for st in range(vl, vd): t_vload(a, st)
        poll_check(a, 180, "s59")
        a.stamp(4)
        stage_t_main(a, sc, sc, vd, pre_store=lambda: poll_issue(a, 180, 4, "s60"))
    a("s_mov_b32 s58, s89")
    assert a.vm[-4:] == ["poll180", "tst", "tst", "tst"], a.vm
    a("s_branch L_pub\nL_x:"); a.vm = []; a.lg = []
    stage_x(a, sc, pre_store=lambda: poll_issue(a, 180, 4, "s60"))
    a("s_lshl_b32 s58, s47, 9\ns_lshl_b32 s50, s48, 7\ns_add_u32 s58, s58, s50\ns_add_u32 s58, s58, 0x%x" % FX)
    a("L_pub:"); a.stamp(7)
    x0, x1, x2 = opt.get("x0", 0), opt.get("x1", 6), opt.get("x2", 10)
    if x0:
        a("s_mov_b32 s11, s58"); y_setup(a)
        a.vm = ["poll180"] + ["pst"]*3
        a.wvm("poll180")
        a("v_cmp_ne_u32 vcc, s80, v180\nv_cmp_ne_u32 s[84:85], s62, v181\ns_or_b64 vcc, vcc, s[84:85]\ns_cbranch_vccnz L_slow")
        a.stamp(9)
        for ks in range(x0): y_xload(a, ks, sc)
        a.wvm("pst"); a.stamp(8); vm1 = list(a.vm)
        flag_store(a, "s11"); a("s_branch L_merge\nL_slow:")
        a.wall(); a.stamp(8); flag_store(a, "s11"); poll_check(a, 180, "s60"); a.stamp(9)
        for ks in range(x0): y_xload(a, ks, sc)
        assert a.vm == vm1
        a("L_merge:")
    else:
        a.wall(); a.stamp(8)
        flag_store(a, "s58")
        y_setup(a)
        poll_check(a, 180, "s60"); a.stamp(9)
    for ks in range(x0, x1): y_xload(a, ks, sc)
    poll_issue(a, 180, 16, "s61")
    for ks in range(x1, x2): y_xload(a, ks, sc)
    a.stamp(10)
    poll_check(a, 180, "s61"); a.stamp(11)
    EP = "v_mov_b32 v186, s80\nv_mov_b32 v188, 0\ns_mov_b32 s60, 0x%x\ns_mov_b64 exec, 1\nbuffer_store_dword v186, v188, s[24:27], s60 offen sc1\ns_mov_b64 exec, -1" % FL
    a("s_or_b32 s54, s2, s44")
    def early():
        a("s_cmp_lg_u32 s54, 0\ns_cbranch_scc1 L_e2\nv_cmp_ne_u32 vcc, s80, v180\nv_cmp_ne_u32 s[84:85], s62, v181\ns_or_b64 vcc, vcc, s[84:85]\ns_cbranch_vccnz L_e2")
        a(EP + "\ns_mov_b32 s54, 1\nL_e2:")
    if opt.get("ee", 1):
        a("s_cmp_lg_u32 s54, 0\ns_cbranch_scc1 L_e1\ns_mov_b32 s60, 0x%x" % FX)
        poll_issue(a, 180, 64, "s60"); a.vm.pop()
        a("L_e1:")
    stage_y_main(a, sc, x2, early if opt.get("ee", 1) else None)
    a("s_cmp_lg_u32 s54, 0\ns_cbranch_scc1 L_fin")
    a("s_mov_b32 s60, 0x%x" % FX)
    poll_issue(a, 180, 64, "s60"); a.wall(); poll_check(a, 180, "s60")
    a(EP)
    a("L_fin:"); a.stamp(14)
    if not opt.get("nowait") or opt.get("stamps"): a.wall()
    write_stamps(a, 0); a("L_end:\ns_endpgm")
    out += head(KN) + a.text() + kd(KN, 192+160, 192)
    return out

if __name__ == "__main__":
    opt = {}
    mode = sys.argv[1]; outp = sys.argv[2]
    for kv in sys.argv[3:]:
        k, v = kv.split("="); opt[k] = int(v) if v.lstrip("-").isdigit() else " " + v.replace("+", " ")
    open(outp, "w").write(globals()["gen_" + mode](opt))
```

```python
import sys
KN = "standalone__weight_only_int_quip__prompt_kernel"
WQ, TF, XF, FL, ST = 0x0, 0x200000, 0x400000, 0x700000, 0x780000
WS_BYTES = 0x800000

class Asm:
    def __init__(s, opt):
        s.L = []; s.vm = []; s.lg = []; s.opt = opt; s.nst = 0; s.uid = 0; s.closed = set()
    def __call__(s, t):
        for x in t.split("\n"):
            x = x.strip()
            if x: s.L.append(x if x.endswith(":") else "    " + x)
    def vmi(s, t, tag):
        assert tag not in s.closed, tag
        s(t); s.vm.append(tag)
    def lgi(s, t, tag): s(t); s.lg.append(tag)
    def _n(s, q, tags):
        idx = [i for i, t in enumerate(q) if t in tags]
        if not idx: return None
        n = len(q) - 1 - max(idx)
        del q[:max(idx) + 1]
        return n
    def wvm(s, *tags):
        s.closed.update(t for t in tags if not t.startswith('poll'))
        n = s._n(s.vm, tags)
        if n is not None: s("s_waitcnt vmcnt(%d)" % min(n, 63))
    def wlg(s, *tags):
        n = s._n(s.lg, tags)
        if n is not None: s("s_waitcnt lgkmcnt(%d)" % min(n, 15))
    def wall(s, vm=True, lg=True):
        s("s_waitcnt" + (" vmcnt(0)" if vm else "") + (" lgkmcnt(0)" if lg else ""))
        if vm: s.vm = []
        if lg: s.lg = []
    def stamp(s, i, early=False):
        if s.opt.get("st0") and i in (9, 10) and not early: return
        if early and not s.opt.get("st0"): return
        if s.opt.get("stamps"):
            s("s_memrealtime s[82:83]"); s.wall(vm=False); s("s_mov_b32 s%d, s82" % (64 + i))
    def label(s, b): s.uid += 1; return "L_%s_%d" % (b, s.uid)
    def text(s): return "\n".join(s.L) + "\n"

def srd(a, d, lo, nbytes):
    a("s_mov_b32 s%d, s%d\ns_and_b32 s%d, s%d, 0xffff\ns_mov_b32 s%d, 0x%x\ns_mov_b32 s%d, 0x20000" % (d, lo, d+1, lo+1, d+2, nbytes, d+3))

def prologue(a, nwg, end):
    a("s_cmp_ge_u32 s2, %d\ns_cbranch_scc1 %s" % (nwg, end))
    if a.opt.get("stamps"):
        for i in range(8): a("s_mov_b64 s[%d:%d], 0" % (64+2*i, 65+2*i))
    a.stamp(0)
    a("s_load_dwordx16 s[4:19], s[0:1], 0\ns_load_dwordx2 s[20:21], s[0:1], 64")
    a("v_lshrrev_b32 v2, 6, v0\nv_and_b32 v1, 63, v0\ns_and_b32 s45, s2, 7\nv_readfirstlane_b32 s44, v2\ns_lshr_b32 s46, s2, 3")
    if a.opt.get("xperm"): a("s_lshr_b32 s50, s45, 1\ns_and_b32 s50, s50, 2\ns_xor_b32 s45, s45, s50")
    a("v_lshlrev_b32 v10, 4, v1")
def ptrs_ready(a):
    a.stamp(9, True)
    a("s_waitcnt lgkmcnt(0)")
def ws_setup(a):
    srd(a, 24, 20, WS_BYTES)
    a("s_add_u32 s22, s20, 0x%x\ns_addc_u32 s23, s21, 0\ns_load_dword s80, s[22:23], 0" % FL)

def write_stamps(a, kidx):
    if not a.opt.get("stamps"): return
    a.stamp(15)
    l = a.label("nost")
    a("s_cmp_lg_u32 s44, 0\ns_cbranch_scc1 %s" % l)
    a("s_lshl_b32 s50, s2, 6\ns_add_u32 s50, s50, 0x%x" % (ST + kidx*0x4000))
    a("v_mov_b32 v2, 0")
    for i in range(4):
        for k in range(4): a("v_mov_b32 v%d, s%d" % (4+k, 64+4*i+k))
        a("buffer_store_dwordx4 v[4:7], v2, s[24:27], s50 offen offset:%d\ns_nop 1" % (16*i))
    a("s_waitcnt vmcnt(0)")
    if "pace" in a.opt:
        k = a.opt["pace"]; lp = a.label("pace")
        a("s_cmp_eq_u32 s%d, 0\ns_cselect_b32 s50, s64, s%d\ns_add_u32 s50, s50, 4000\n%s:\ns_sleep 2\ns_memrealtime s[82:83]\ns_waitcnt lgkmcnt(0)\ns_sub_u32 s51, s82, s50\ns_cmp_lt_i32 s51, 0\ns_cbranch_scc1 %s" % (64+k, 64+k, lp, lp))
    a("%s:" % l)

def t_coords(a):
    if a.opt.get("mix", 1):
        a("s_mul_i32 s50, s46, 43\ns_lshr_b32 s50, s50, 8\ns_mul_i32 s51, s50, 6\ns_sub_u32 s51, s46, s51")
        a("s_lshr_b32 s52, s45, 2\ns_lshl_b32 s47, s52, 2\ns_add_u32 s47, s47, s50\ns_and_b32 s48, s45, 3\ns_mul_i32 s48, s48, 6\ns_add_u32 s48, s48, s51")
        r = a.opt.get("rot", 1)
        a({2: "s_mov_b32 s51, 0", 3: "s_and_b32 s51, s51, 1", 4: "s_lshr_b32 s51, s51, 1"}.get(r, "s_lshl_b32 s51, s51, 1"))
        a("s_mul_i32 s91, s50, 3\ns_add_u32 s91, s91, s51\ns_add_u32 s91, s91, s52")
    else:
        a("s_cmp_ge_u32 s45, 3\ns_cselect_b32 s50, 1, 0\ns_mul_i32 s51, s50, 3\ns_sub_u32 s51, s45, s51")
        a("s_lshl_b32 s47, s50, 2\ns_lshr_b32 s52, s46, 3\ns_add_u32 s47, s47, s52")
        a("s_lshl_b32 s48, s51, 3\ns_and_b32 s52, s46, 7\ns_add_u32 s48, s48, s52")
        a("s_and_b32 s50, s47, 3\ns_mul_i32 s50, s50, 3\ns_and_b32 s51, s48, 7\ns_mul_i32 s51, s51, 3\ns_lshr_b32 s51, s51, 1\ns_add_u32 s91, s50, s51")
        if a.opt.get("rot", 1) == 2: a("s_lshr_b32 s51, s47, 2\ns_add_u32 s91, s50, s51")
    a("s_cmp_ge_u32 s91, 12\ns_cselect_b32 s51, 12, 0\ns_sub_u32 s91, s91, s51")
    if not a.opt.get("rot", 1): a("s_mov_b32 s91, 0")
def x_coords(a):
    if a.opt.get("mix", 1):
        a("s_sub_u32 s50, s46, 24\ns_lshr_b32 s51, s50, 2\ns_lshl_b32 s47, s45, 1\ns_add_u32 s47, s47, s51\ns_and_b32 s48, s50, 3")
        a("s_mul_i32 s91, s48, 5\ns_lshr_b32 s91, s91, 1\ns_mul_i32 s51, s51, 5\ns_add_u32 s91, s91, s51\ns_add_u32 s91, s91, s45")
        a("s_cmp_ge_u32 s91, 10\ns_cselect_b32 s51, 10, 0\ns_sub_u32 s91, s91, s51")
    else:
        a("s_sub_u32 s47, s45, 6\ns_lshl_b32 s47, s47, 3\ns_lshr_b32 s50, s46, 2\ns_add_u32 s47, s47, s50\ns_and_b32 s48, s46, 3")
        a("s_mul_i32 s50, s48, 5\ns_lshr_b32 s50, s50, 1\ns_and_b32 s51, s47, 7\ns_add_u32 s91, s50, s51")
    a("s_cmp_ge_u32 s91, 10\ns_cselect_b32 s51, 10, 0\ns_sub_u32 s91, s91, s51")
    if not a.opt.get("xrot", a.opt.get("rot", 1)): a("s_mov_b32 s91, 0")

RV = 10; WR = RV*4096; DL = 8*4096
def stage_d_addr(a):
    a("v_lshrrev_b32 v2, 4, v1\ns_mul_i32 s50, s44, 20\nv_add_u32 v2, s50, v2\nv_and_b32 v3, 15, v1\ns_movk_i32 s53, 6144")
    for p in range(5):
        a("v_add_u32 v4, %d, v2\nv_and_b32 v5, 15, v4\nv_xor_b32 v5, v5, v3\nv_mul_u32_u24 v4, s53, v4\nv_lshl_add_u32 v%d, v5, 4, v4" % (4*p, 152+p))
        if 0 < p < 4: a("v_subrev_u32 v%d, %d, v%d" % (152+p, 1024*p, 152+p))
    a("s_mul_i32 s51, s47, %d\ns_lshl_b32 s52, s48, 8\ns_add_u32 s92, s51, s52" % (80*6144))
    a("s_mul_i32 s57, s44, %d\ns_add_u32 m0, s57, %d" % (WR, DL))
    a("v_and_b32 v157, 48, v1")
    a("s_and_b32 s52, s44, 1\ns_lshl_b32 s52, s52, 6\ns_lshl_b32 s53, s48, 7\ns_add_u32 s52, s52, s53")
    for u in range(3):
        a("s_lshr_b32 s53, s44, 1\ns_add_u32 s53, s53, %d\ns_min_u32 s53, s53, 4\ns_mul_i32 s54, s47, 5\ns_add_u32 s53, s53, s54\ns_lshr_b32 s53, s53, 3" % (2*u))
        a("s_mul_i32 s53, s53, 3072\ns_add_u32 s%d, s53, s52" % (93+u))
def stage_d_loads(a):
    if a.opt.get("szf"): sz_loads(a)
    srd(a, 28, 6, 640*1536*4)
    for p in range(5):
        if p == 4: a("s_add_u32 m0, s57, %d\ns_nop 0" % (DL + 4096))
        a.vmi("buffer_load_dwordx4 v%d, s[28:31], s92 offen offset:%d%s lds" % (152+p, 1024*(p & 3) if p < 4 else 0, a.opt.get("qnt", "")), "qw")
    if not a.opt.get("szf"): sz_loads(a)
def sz_loads(a):
    srd(a, 36, 8, 5*1536*2); srd(a, 40, 10, 5*1536*2)
    for u in range(3):
        a.vmi("buffer_load_dwordx4 v[%d:%d], v157, s[36:39], s%d offen" % (128+8*u, 131+8*u, 93+u), "sz")
        a.vmi("buffer_load_dwordx4 v[%d:%d], v157, s[40:43], s%d offen" % (132+8*u, 135+8*u, 93+u), "sz")
def stage_d_raddr(a):
    a("v_and_b32 v11, 15, v1\nv_lshrrev_b32 v12, 4, v1\nv_lshlrev_b32 v12, 1, v12\ns_and_b32 s50, s44, 1\ns_lshl_b32 s50, s50, 3\nv_add_u32 v12, s50, v12\nv_xor_b32 v12, v12, v11")
    a("s_lshr_b32 s50, s44, 1\ns_lshl_b32 s50, s50, 4\nv_add_u32 v11, s50, v11\ns_movk_i32 s51, 3277\ns_mov_b32 s52, %d" % (WR - 5120))
    for u in range(3):
        a("v_add_u32 v13, %d, v11\nv_min_u32 v13, 79, v13\nv_mul_u32_u24 v14, s51, v13\nv_lshrrev_b32 v14, 16, v14\nv_mul_u32_u24 v14, s52, v14\nv_lshl_add_u32 v13, v13, 8, v14" % (32*u))
        a("v_add_u32 v13, %d, v13\nv_lshl_add_u32 v%d, v12, 4, v13\nv_xor_b32 v%d, 16, v%d" % (DL, 152+2*u, 153+2*u, 152+2*u))
    a("s_mul_i32 s50, s47, 5\ns_lshr_b32 s51, s44, 1\ns_add_u32 s50, s50, s51\ns_mul_i32 s50, s50, 48\ns_lshl_b32 s51, s48, 1\ns_add_u32 s50, s50, s51")
    a("s_and_b32 s51, s44, 1\ns_add_u32 s50, s50, s51\ns_lshl_b32 s50, s50, 10\ns_add_u32 s92, s50, %d\ns_add_u32 s93, s92, %d\ns_add_u32 s94, s92, %d" % (WQ, 96*1024, 192*1024))
def stage_d_compute(a, sc):
    def prep(u):
        s0, z0, t = 128+8*u, 132+8*u, 48+16*u
        for k in range(4):
            a("v_lshlrev_b32 v%d, 16, v%d\nv_and_b32 v%d, 0xffff0000, v%d" % (t+2*k, s0+k, t+2*k+1, s0+k))
            a("v_lshlrev_b32 v%d, 16, v%d\nv_and_b32 v%d, 0xffff0000, v%d" % (t+8+2*k, z0+k, t+8+2*k+1, z0+k))
        for k in range(0, 8, 2):
            a("v_pk_mul_f32 v[%d:%d], v[%d:%d], v[%d:%d] neg_lo:[1,0] neg_hi:[1,0]" % (t+8+k, t+9+k, t+8+k, t+9+k, t+k, t+k+1))
    if a.opt.get("szf"):
        a.wvm("sz"); prep(0); prep(1); prep(2); a.wvm("qw")
    else: a.wvm("qw", "sz"); prep(0)
    a("s_barrier"); a.stamp(1)
    for u in range(3):
        q = 16 + 8*u
        a.lgi("ds_read_b128 v[%d:%d], v%d" % (q, q+3, 152+2*u), "dq%d" % u)
        a.lgi("ds_read_b128 v[%d:%d], v%d" % (q+4, q+7, 153+2*u), "dq%d" % u)
    skip = a.label("dskip")
    for u in range(3):
        q = 16 + 8*u; t = 48+16*u; o = 100 + 4*u
        if u == 2: a.wlg("dq2"); a("s_cmp_ge_u32 s44, 2\ns_cbranch_scc1 %s" % skip)
        if u and not a.opt.get('szf'): prep(u)
        a.wlg("dq%d" % u)
        for k in range(8): a("v_cvt_f32_i32 v%d, v%d" % (q+k, q+k))
        for k in range(0, 8, 2): a("v_pk_fma_f32 v[%d:%d], v[%d:%d], v[%d:%d], v[%d:%d]" % (q+k, q+k+1, q+k, q+k+1, t+k, t+k+1, t+8+k, t+9+k))
        for k in range(4): a("v_cvt_pk_bf16_f32 v%d, v%d, v%d" % (o+k, q+2*k, q+2*k+1))
        a("buffer_store_dwordx4 v[%d:%d], v10, s[24:27], s%d offen%s" % (o, o+3, 92+u, sc))
        if u < 2: a.vm.append("dst")
    a("%s:" % skip)

def t_setup(a):
    srd(a, 32, 14, 1536*1536*2)
    a("v_lshrrev_b32 v6, 3, v1\nv_and_b32 v7, 7, v1\nv_lshrrev_b32 v8, 2, v1\nv_and_b32 v8, 4, v8\nv_xor_b32 v7, v7, v8")
    a("s_movk_i32 s50, 3072\nv_mul_u32_u24 v6, s50, v6\nv_lshl_add_u32 v2, v7, 4, v6")
    for p in range(1, 4): a("v_add_u32 v%d, %d, v2" % (2+p, p*(24576-1024)))
    a("v_lshrrev_b32 v11, 4, v1\nv_lshlrev_b32 v11, 3, v11\nv_bfe_u32 v12, v1, 2, 2\nv_add_u32 v11, v11, v12\nv_lshlrev_b32 v11, 7, v11")
    a("v_and_b32 v12, 3, v1\nv_lshrrev_b32 v13, 1, v1\nv_and_b32 v13, 4, v13\nv_xor_b32 v12, v12, v13\nv_lshl_add_u32 v11, v12, 4, v11")
    a("s_mov_b32 s53, s57")
    for b in range(4):
        a("s_add_u32 s50, s44, %d\ns_and_b32 s51, s50, 1\ns_lshl_b32 s51, s51, 3\ns_add_u32 s51, s51, s53\ns_and_b32 s50, s50, 2\ns_lshl_b32 s50, s50, 5" % b)
        a("v_xor_b32 v%d, s50, v11\nv_add_u32 v%d, s51, v%d" % (6+b, 6+b, 6+b))
    a("s_mul_i32 s55, s44, %d\ns_lshl_b32 s50, s48, 7\ns_add_u32 s55, s55, s50" % (12*32*3072))
    a("s_mul_i32 s56, s47, %d\ns_mul_i32 s50, s44, %d\ns_add_u32 s56, s56, s50\ns_add_u32 s56, s56, %d" % (5*48*1024, 12*1024, WQ))
    a("s_mov_b32 s50, s91")
    a("s_mul_i32 s86, s50, 98304\ns_add_u32 s86, s86, s55\ns_add_u32 s87, s55, %d\ns_lshl_b32 s88, s50, 10\ns_add_u32 s88, s88, s56\ns_add_u32 s90, s56, 12288" % (12*98304))
def t_vload1(a, s, p, setm0=True):
    if p == 0 and s > 0: a("s_add_u32 s86, s86, 98304\ns_cmp_eq_u32 s86, s87\ns_cselect_b32 s86, s55, s86")
    if setm0: a("s_add_u32 m0, s57, %d\ns_nop 0" % ((s % RV)*4096))
    a.vmi("buffer_load_dwordx4 v%d, s[32:35], s86 offen offset:%d%s lds" % (2+p, 1024*p, a.opt.get("vnt", "")), "V%d" % s)
def t_vload(a, s):
    for p in range(4): t_vload1(a, s, p, p == 0)
def t_aload1(a, s, b, sc):
    NA = a.opt.get("na", 4)
    r = (s % NA)*20 + 4*b
    if a.opt.get("adiag") and s >= NA: return
    if b == 0 and s > 0: a("s_add_u32 s88, s88, 1024\ns_cmp_eq_u32 s88, s90\ns_cselect_b32 s88, s56, s88")
    if b: a("s_add_u32 s50, s88, %d" % (b*48*1024))
    a.vmi("buffer_load_dwordx4 a[%d:%d], v10, s[24:27], %s offen%s" % (r, r+3, "s50" if b else "s88", sc), "A%d" % s)
def a_touch_addr(a):
    at = a.opt["at"]; skip = max(0, (12-at)*40 - 384)
    a("s_mul_i32 s50, s46, 43\ns_lshr_b32 s50, s50, 8\ns_mul_i32 s50, s50, 6\ns_sub_u32 s50, s46, s50\ns_lshl_b32 s50, s50, 6\ns_add_u32 s50, s50, %d" % (at*40))
    a("v_add_u32 v184, s50, v1\nv_min_u32 v184, 479, v184\ns_movk_i32 s50, 1639\nv_mul_u32_u24 v185, s50, v184\nv_lshrrev_b32 v185, 16, v185\nv_mul_u32_u24 v183, 40, v185\nv_sub_u32 v184, v184, v183")
    a("v_add_u32 v185, s91, v185\nv_subrev_u32 v183, 12, v185\nv_min_u32 v185, v185, v183\nv_lshlrev_b32 v185, 10, v185")
    a("v_lshrrev_b32 v183, 3, v184\nv_and_b32 v184, 7, v184\nv_lshl_add_u32 v185, v184, 7, v185\ns_mov_b32 s50, 49152\nv_mul_u32_u24 v183, s50, v183\nv_add_u32 v185, v185, v183")
def t_bread(a, s, b, t):
    r = 96 + (s & 1)*16 + 4*b + 2*t
    a.lgi("ds_read_b64_tr_b16 v[%d:%d], v%d offset:%d" % (r, r+1, 6+b, (s % RV)*4096 + t*512), "B%d" % s)
def stage_t_main(a, ldsc, stsc, vdone, pre_store=None):
    ACC = 16
    NA = a.opt.get("na", 4)
    vin = a.opt.get("vin", 0)
    for s in range(RV):
        if s >= vdone and (not vin or s < a.opt.get("vmin", 0)): t_vload(a, s)
        if s == a.opt.get("at", -1): a.vmi("buffer_load_dword v184, v185, s[24:27], s56 offen%s" % ldsc, "at")
        if s < NA:
            for b in range(5): t_aload1(a, s, b, ldsc)
    a.wvm("V0")
    for b in range(4):
        for t in range(2): t_bread(a, 0, b, t)
    vq = [(s, p) for s in range(max(vdone, a.opt.get('vmin', 0)) if vin else RV, 12) for p in range(4)]
    a("v_add_u32 v11, s57, v10")
    for b in range(1, 4):
        a("s_sub_u32 s50, s44, %d\ns_and_b32 s50, s50, 3\ns_mul_i32 s50, s50, %d\ns_add_u32 s50, s50, %d\nv_add_u32 v%d, s50, v10" % (b, WR, (b-1)*5120, 11+b))
    for s in range(12):
        a.wvm("A%d" % s, "V%d" % (s+1)); a.wlg("B%d" % s)
        if s == 0: a.stamp(5)
        order = [(b, db) for db in range(5) for b in range(4)] if s < 11 else [(b, db) for b in (1, 2, 3, 0) for db in range(5)]
        for n, (b, db) in enumerate(order):
            c = ACC + (b*5+db)*4; ar = (s % NA)*20 + 4*db; br = 96 + (s & 1)*16 + 4*b
            a("v_mfma_f32_16x16x32_bf16 v[%d:%d], a[%d:%d], v[%d:%d], %s" % (c, c+3, ar, ar+3, br, br+3, "0" if s == 0 else "v[%d:%d]" % (c, c+3)))
            if s+1 < 12 and n < 16 and (n & 1) == 0: t_bread(a, s+1, n >> 2, (n >> 1) & 1)
            if b == 3 and s + NA < 12: t_aload1(a, s+NA, db, ldsc)
            if b == 1 and db in ((0, 1, 2, 3) if vin == 1 else (0, 1, 2, 3, 4) if vin else (1, 3)) and vq and vq[0][0] - RV <= s: t_vload1(a, *vq.pop(0))
            if s == 11 and n >= 8:
                wb, wd = order[n-8]; c = ACC + (wb*5+wd)*4
                a.lgi("ds_write_b128 v11, v[%d:%d] offset:%d" % (c, c+3, (wb-1)*5120 + wd*1024), "rw")
    assert not vq
    a("s_nop 1")
    for wb, wd in order[12:15]:
        c = ACC + (wb*5+wd)*4
        a.lgi("ds_write_b128 v11, v[%d:%d] offset:%d" % (c, c+3, (wb-1)*5120 + wd*1024), "rw")
    a.wall(vm=False); a("s_barrier")
    a.stamp(6)
    for db in range(5):
        for b in range(3):
            r = 36 + (db*3+b)*4
            a.lgi("ds_read_b128 v[%d:%d], v%d offset:%d" % (r, r+3, 12+b, db*1024), "rr%d" % db)
    if pre_store: pre_store()
    a("s_lshl_b32 s50, s48, 2\ns_add_u32 s50, s50, s44\ns_mul_i32 s50, s50, 20\ns_lshr_b32 s51, s47, 1\ns_mul_i32 s51, s51, 5\ns_add_u32 s50, s50, s51")
    a("s_lshl_b32 s50, s50, 10\ns_add_u32 s50, s50, %d\ns_and_b32 s51, s47, 1\ns_lshl_b32 s52, s51, 11\ns_add_u32 s52, s52, s50" % TF)
    a("s_lshl_b32 s51, s51, 9\ns_add_u32 s51, s51, s50\ns_add_u32 s51, s51, 4096\nv_lshlrev_b32 v3, 3, v1")
    for db in range(5):
        a.wlg("rr%d" % db)
        c = ACC + db*4; r = 36 + db*12
        for k in range(0, 4, 2):
            a("v_pk_add_f32 v[%d:%d], v[%d:%d], v[%d:%d]" % (c+k, c+k+1, c+k, c+k+1, r+k, r+k+1))
            a("v_pk_add_f32 v[%d:%d], v[%d:%d], v[%d:%d]" % (r+4+k, r+5+k, r+4+k, r+5+k, r+8+k, r+9+k))
        for k in range(0, 4, 2):
            a("v_pk_add_f32 v[%d:%d], v[%d:%d], v[%d:%d]" % (c+k, c+k+1, c+k, c+k+1, r+4+k, r+5+k))
        o = 96 + 2*db
        a("v_cvt_pk_bf16_f32 v%d, v%d, v%d\nv_cvt_pk_bf16_f32 v%d, v%d, v%d" % (o, c, c+1, o+1, c+2, c+3))
        if db in (1, 3): a.vmi("buffer_store_dwordx4 v[%d:%d], v10, s[24:27], s52 offen offset:%d%s" % (o-2, o+1, (db >> 1)*1024, stsc), "tst")
        if db == 4: a.vmi("buffer_store_dwordx2 v[%d:%d], v3, s[24:27], s51 offen%s" % (o, o+1, stsc), "tst")

XS = 36864
def stage_x(a, stsc, pre_store=None):
    x_coords(a)
    a("s_movk_i32 s53, 1280\nv_lshrrev_b32 v11, 3, v1\ns_lshl_b32 s50, s44, 5\nv_add_u32 v11, s50, v11\nv_and_b32 v12, 7, v1\nv_lshrrev_b32 v13, 4, v1")
    for p in range(4):
        a("v_add_u32 v14, %d, v13\nv_and_b32 v14, 7, v14\nv_xor_b32 v14, v14, v12\nv_add_u32 v15, %d, v11\nv_mul_u32_u24 v15, s53, v15" % (4*p, 8*p))
        a("v_lshl_add_u32 v%d, v14, 4, v15" % (2+p))
        if p: a("v_subrev_u32 v%d, %d, v%d" % (2+p, 1024*p, 2+p))
    a("s_movk_i32 s54, 3277\ns_lshl_b32 s50, s44, 4")
    UR = [6, 7, 8, 9, 11]
    for p in range(5):
        a("v_add_u32 v12, %d, v1\nv_mul_u32_u24 v13, s54, v12\nv_lshrrev_b32 v13, 16, v13\nv_mul_u32_u24 v14, 20, v13\nv_sub_u32 v12, v12, v14" % (64*p))
        a("v_lshrrev_b32 v14, 2, v13\nv_and_b32 v14, 2, v14\nv_xor_b32 v12, v12, v14\nv_add_u32 v13, s50, v13\nv_mul_u32_u24 v13, s53, v13\nv_lshl_add_u32 v%d, v12, 4, v13" % UR[p])
        if 0 < p < 4: a("v_subrev_u32 v%d, %d, v%d" % (UR[p], 1024*p, UR[p]))
    a("s_mul_i32 s55, s47, %d\ns_mul_i32 s56, s48, 320\ns_lshl_b32 s57, s44, 12\ns_mul_i32 s58, s44, 5120\ns_add_u32 s58, s58, 16384" % (128*1280))
    a("s_mov_b32 s50, s91")
    a("s_lshl_b32 s86, s50, 7\ns_add_u32 s86, s86, s55\ns_add_u32 s87, s55, 1280\ns_mul_i32 s88, s50, 81920\ns_add_u32 s88, s88, s56\ns_add_u32 s90, s56, 819200")
    def dma1(st, i):
        sl = (st % 4)*XS
        if i < 4:
            if i == 0 and st > 0: a("s_add_u32 s86, s86, 128\ns_cmp_eq_u32 s86, s87\ns_cselect_b32 s86, s55, s86")
            a("s_add_u32 m0, s57, %d\ns_nop 0" % sl)
            a.vmi("buffer_load_dwordx4 v%d, s[28:31], s86 offen offset:%d%s lds" % (2+i, 1024*i, a.opt.get("xnt", "")), "S%d" % st)
        else:
            p = i - 4
            if p == 0 and st > 0: a("s_add_u32 s88, s88, 81920\ns_cmp_eq_u32 s88, s90\ns_cselect_b32 s88, s56, s88")
            a("s_add_u32 m0, s58, %d\ns_nop 0" % (sl + (4096 if p == 4 else 0)))
            a.vmi("buffer_load_dwordx4 v%d, s[32:35], s88 offen offset:%d%s lds" % (UR[p], 1024*(p & 3) if p < 4 else 0, a.opt.get("unt", "")), "S%d" % st)
    def dma(st):
        for i in range(9): dma1(st, i)
    ptrs_ready(a); srd(a, 28, 4, 2048*640*2); srd(a, 32, 12, 640*640*2)
    XP = a.opt.get('xpre', 2)
    for st in range(XP): dma(st)
    a.stamp(10, True)
    dq = [(st, i) for st in range(XP, 10) for i in range(9)]
    free = 4
    ws_setup(a); flag_addrs(a)
    a("v_and_b32 v12, 15, v1\nv_lshrrev_b32 v13, 4, v1\nv_lshrrev_b32 v14, 1, v12\nv_xor_b32 v14, v14, v13\ns_lshr_b32 s50, s44, 1\ns_lshl_b32 s50, s50, 13")
    a("v_lshlrev_b32 v12, 7, v12\nv_lshl_add_u32 v12, v14, 4, v12\nv_add_u32 v176, s50, v12\nv_xor_b32 v177, 64, v176")
    a("v_add_u32 v178, %d, v176\nv_add_u32 v179, %d, v177" % (2*XS, 2*XS))
    a("v_lshlrev_b32 v12, 3, v13\nv_bfe_u32 v14, v1, 2, 2\nv_add_u32 v12, v12, v14\ns_movk_i32 s50, 320\nv_mul_u32_u24 v12, s50, v12\nv_and_b32 v14, 3, v1\nv_lshl_add_u32 v12, v14, 3, v12")
    a("s_and_b32 s50, s44, 1\ns_mul_i32 s51, s50, 160\ns_add_u32 s51, s51, 16384\nv_add_u32 v12, s51, v12\nv_and_b32 v13, 1, v13\nv_lshlrev_b32 v13, 5, v13")
    a("s_lshl_b32 s50, s50, 1\ns_sub_u32 s50, 1, s50\nv_mul_lo_u32 v13, v13, s50\nv_add_u32 v180, v12, v13\nv_sub_u32 v181, v12, v13")
    a("v_add_u32 v182, %d, v180\nv_add_u32 v183, %d, v181" % (2*XS, 2*XS))
    ACC = 16; FB = 96
    def reads(u):
        st, k = u >> 1, u & 1; sl = st % 4; hi = (sl >> 1)*2; lo = (sl & 1)*XS; fb = FB + 36*(u & 1)
        R = []
        for i in range(5):
            if i < 4: R.append("ds_read_b128 v[%d:%d], v%d offset:%d" % (fb+4*i, fb+4*i+3, 176+hi+k, lo + i*2048))
            for t in range(2):
                r = fb + 16 + 4*i + 2*t
                R.append("ds_read_b64_tr_b16 v[%d:%d], v%d offset:%d" % (r, r+1, 180+hi+(i & 1), lo + (32*k+4*t)*320 + 32*i))
        return R
    a(NONCE); a.wvm("S0"); a("s_barrier")
    a.stamp(1)
    for r in reads(0): a.lgi(r, "F0")
    for u in range(20):
        a.wlg("F%d" % u)
        R = reads(u+1) if u < 19 else []
        fb = FB + 36*(u & 1); n = 0
        for eb in range(5):
            for mb in range(4):
                c = ACC + (eb*4+mb)*4; ar = fb + 16 + 4*eb; br = fb + 4*mb
                a("v_mfma_f32_16x16x32_bf16 v[%d:%d], v[%d:%d], v[%d:%d], %s" % (c, c+3, ar, ar+3, br, br+3, "0" if u == 0 else "v[%d:%d]" % (c, c+3)))
                if n == 1 and (u & 1) and u < 19:
                    st = u >> 1
                    a.wvm("S%d" % (st+1)); a("s_nop 0" if a.opt.get("xnobar") else "s_barrier"); free = st + 5
                if n >= 1 and R:
                    r = R.pop(0)
                    if not a.opt.get("xnoread"): a.lgi(r, "F%d" % (u+1))
                if n % a.opt.get('xev', 4) == a.opt.get('xev', 4) - 1 and dq and dq[0][0] < free:
                    d = dq.pop(0)
                    if not a.opt.get("xnodma"): dma1(*d)
                n += 1
        assert not R
    a.stamp(6)
    assert not dq
    if pre_store: pre_store()
    a("s_lshl_b32 s50, s47, 3\ns_lshr_b32 s51, s44, 1\ns_lshl_b32 s51, s51, 2\ns_add_u32 s50, s50, s51\ns_mul_i32 s50, s50, 20\ns_mul_i32 s51, s48, 5\ns_add_u32 s50, s50, s51")
    a("s_lshl_b32 s50, s50, 10\ns_add_u32 s50, s50, %d\ns_and_b32 s51, s44, 1\ns_lshl_b32 s52, s51, 11\ns_add_u32 s52, s52, s50" % XF)
    a("s_lshl_b32 s51, s51, 9\ns_add_u32 s51, s51, s50\ns_add_u32 s51, s51, 4096\nv_lshlrev_b32 v3, 3, v1\ns_nop 3")
    for mb in range(4):
        o = 96 + 12*mb
        for eb in range(5):
            c = ACC + (eb*4+mb)*4
            a("v_cvt_pk_bf16_f32 v%d, v%d, v%d\nv_cvt_pk_bf16_f32 v%d, v%d, v%d" % (o+2*eb, c, c+1, o+2*eb+1, c+2, c+3))
            if eb in (1, 3): a.vmi("buffer_store_dwordx4 v[%d:%d], v10, s[24:27], s52 offen offset:%d%s" % (o+2*eb-2, o+2*eb+1, (eb >> 1)*1024, stsc), "xst")
            if eb == 4: a.vmi("buffer_store_dwordx2 v[%d:%d], v3, s[24:27], s51 offen%s" % (o+8, o+9, stsc), "xst")
        if mb < 3: a("s_add_u32 s52, s52, 20480\ns_add_u32 s51, s51, 20480")

def y_coords(a):
    a("s_lshr_b32 s81, s45, 1\ns_lshl_b32 s81, s81, 2\ns_lshr_b32 s50, s46, 3\ns_add_u32 s81, s81, s50")
    a("s_and_b32 s49, s45, 1\ns_lshl_b32 s49, s49, 3\ns_and_b32 s50, s46, 7\ns_add_u32 s49, s49, s50")
def y_setup(a):
    a("s_mov_b32 s47, s81\ns_mov_b32 s48, s49")
    srd(a, 28, 16, 2048*1536*2)
    a("v_lshlrev_b32 v11, 3, v1\nv_add_u32 v12, 4096, v11\nv_add_u32 v13, 61440, v10\nv_add_u32 v14, 61440, v11")
    a("s_lshl_b32 s55, s47, 3\ns_lshl_b32 s50, s44, 1\ns_add_u32 s55, s55, s50\ns_mul_i32 s55, s55, 20480\ns_add_u32 s55, s55, %d" % XF)
    a("s_mul_i32 s56, s48, 122880\ns_add_u32 s56, s56, %d" % TF)
    for i in range(3):
        a("s_mul_i32 s50, s44, 3\ns_add_u32 s50, s50, %d\ns_and_b32 s51, s50, 1\ns_lshr_b32 s50, s50, 1\ns_mul_i32 s50, s50, 20480\ns_lshl_b32 s51, s51, 10\ns_add_u32 s%d, s50, s51" % (i, 57+i))
def y_xload1(a, ks, mb, sc):
    G, r = divmod(ks, 5)
    d = (ks*2+mb)*4
    a("s_add_u32 s50, s55, %d" % (mb*20480 + G*5120))
    if r < 4: a.vmi("buffer_load_dwordx4 a[%d:%d], v10, s[24:27], s50 offen offset:%d%s" % (d, d+3, r*1024, sc), "X%d" % ks)
    else:
        for h in range(2): a.vmi("buffer_load_dwordx2 a[%d:%d], v12, s[24:27], s50 offen offset:%d%s" % (d+2*h, d+2*h+1, h*512, sc), "X%d" % ks)
def y_xload(a, ks, sc):
    for mb in range(2): y_xload1(a, ks, mb, sc)
def y_tload1(a, st, i, sc):
    a("s_add_u32 m0, s%d, %d\ns_add_u32 s50, s56, m0" % (57+i, st*2048))
    a.vmi("buffer_load_dwordx4 v10, s[24:27], s50 offen%s lds" % sc, "T%d" % st)
def stage_y_main(a, sc, xdone, early=None):
    ACC = 16; FB = 64
    NT = a.opt.get("ytail", 0); K0 = 20 - NT
    q = [(min(2*st, K0) - 1.5, lambda st=st, i=i: y_tload1(a, st, i, sc)) for st in range(10) for i in range(3)]
    q += [(min(ks, K0) - a.opt.get("xlead", 0), lambda ks=ks, mb=mb: y_xload1(a, ks, mb, sc)) for ks in range(xdone, 20) for mb in range(2)]
    q = [f for d, f in sorted(q, key=lambda e: e[0])]
    for i in range(a.opt.get("ypre", 6)): q.pop(0)()
    ev = a.opt.get("yev", 4 if xdone >= 10 else 3)
    def rd(r, nb, ks): return "ds_read_b128 v[%d:%d], v%d offset:%d" % (r, r+3, 10 if nb < 3 else 13, (nb % 3)*20480 + ks*1024)
    def rd2(r, nb, ks):
        if ks % 5 < 4: return [rd(r, nb, ks)]
        return ["ds_read_b64 v[%d:%d], v%d offset:%d" % (r+2*h, r+2*h+1, 11 if nb < 3 else 14, (nb % 3)*20480 + ks*1024 + 512*h) for h in range(2)]
    def reads(ks): return [rd2(FB + 24*(ks & 1) + 4*nb, nb, ks) for nb in range(6)]
    def tb(P): return 112 + 8*NT*(P & 1)
    def treads(P): return [rd2(tb(P) + 4*(2*j+sub), 2*P+sub, K0+j) for j in range(NT) for sub in range(2)]
    def epi_addr():
        a("v_and_b32 v2, 15, v1\nv_lshrrev_b32 v3, 4, v1\ns_movk_i32 s52, 3072\nv_mul_u32_u24 v2, s52, v2\nv_lshl_add_u32 v2, v3, 4, v2")
        a("s_lshl_b32 s52, s47, 2\ns_add_u32 s52, s52, s44\ns_mul_i32 s52, s52, %d\ns_mul_i32 s53, s48, 192\ns_add_u32 s52, s52, s53\ns_add_u32 s53, s52, %d" % (32*3072, 16*3072))
    def epi(P, mb, o):
        E = []
        for sub in range(2):
            c = ACC + ((2*P+sub)*2+mb)*4
            E.append(lambda c=c, sub=sub: a("v_cvt_pk_bf16_f32 v%d, v%d, v%d\nv_cvt_pk_bf16_f32 v%d, v%d, v%d" % (o+2*sub, c, c+1, o+2*sub+1, c+2, c+3)))
        E.append(lambda: a.vmi("buffer_store_dwordx4 v[%d:%d], v2, s[28:31], s%d offen offset:%d%s" % (o, o+3, 52+mb, 64*P, a.opt.get("ysc", "")), "yst"))
        return E
    def mfma(nb, mb, ar, ks):
        c = ACC + (nb*2+mb)*4; br = (ks*2+mb)*4
        a("v_mfma_f32_16x16x32_bf16 v[%d:%d], v[%d:%d], a[%d:%d], %s" % (c, c+3, ar, ar+3, br, br+3, "0" if ks == 0 else "v[%d:%d]" % (c, c+3)))
    epi_addr()
    a.wvm("T0"); a("s_barrier")
    a.stamp(12)
    for rr in reads(0):
        for r in rr: a.lgi(r, "F0")
    for ks in range(K0):
        a.wvm("X%d" % ks); a.wlg("F%d" % ks)
        R = reads(ks+1) if ks < K0-1 else treads(0) if NT else []
        fb = FB + 24*(ks & 1); n = 0
        for nb in range(6):
            for mb in range(2):
                mfma(nb, mb, fb + 4*nb, ks)
                if n == 1 and (ks & 1) and ks < 19:
                    a.wvm(*["T%d" % t for t in (range((ks >> 1)+1, 10) if ks == K0-1 else [(ks >> 1)+1])]); a("s_barrier")
                if ks == 2 and n == 8 and early: early()
                if n >= 1 and R:
                    for r in R.pop(0): a.lgi(r, "F%d" % (ks+1))
                if n % ev == ev - 1 and q: q.pop(0)()
                n += 1
        assert not R
    assert not q
    E = []
    for P in range(3 if NT else 0):
        if P == 0: a.wvm(*["X%d" % k for k in range(K0, 20)])
        a.wlg("F%d" % (K0+P))
        R = treads(P+1) if P < 2 else []
        n = 0
        for j in range(NT):
            for sub in range(2):
                for mb in range(2):
                    mfma(2*P+sub, mb, tb(P) + 4*(2*j+sub), K0+j)
                    if R and n % 2 == 0:
                        for r in R.pop(0): a.lgi(r, "F%d" % (K0+P+1))
                    if n >= 2 and E: E.pop(0)()
                    n += 1
        assert not R and not E
        E = epi(P, 0, 96 + 8*(P & 1)) + epi(P, 1, 100 + 8*(P & 1))
    a.stamp(13)
    a("s_nop 7\ns_nop 3")
    if not NT: E = sum([epi(P, mb, FB + (P*2+mb)*4) for P in range(3) for mb in range(2)], [])
    for e in E: e()

def kd(name, vg, acc):
    return """.section .rodata,"a"
.p2align 6
.amdhsa_kernel %s
  .amdhsa_next_free_vgpr %d
  .amdhsa_next_free_sgpr 102
  .amdhsa_accum_offset %d
  .amdhsa_group_segment_fixed_size 0
  .amdhsa_kernarg_size 72
  .amdhsa_user_sgpr_count 2
  .amdhsa_user_sgpr_kernarg_segment_ptr 1
  .amdhsa_system_sgpr_workgroup_id_x 1
.end_amdhsa_kernel
""" % (name, vg, acc)
def head(name): return ".text\n.globl %s\n.p2align 8\n.type %s,@function\n%s:\n" % (name, name, name)
HDR = open("standalone__weight_only_int_quip__prompt.s.ref").read().split("; Override")[0] if len(sys.argv) > 0 else ""

FD, FT, FX = FL + 0x8000, FL + 0x10000, FL + 0x18000
SPIN = 20000
def poll_issue(a, r, n, soff):
    a("v_min_u32 v%d, %d, v1\nv_lshlrev_b32 v%d, 7, v%d" % (r+2, n-1, r+2, r+2))
    a.vmi("buffer_load_dwordx2 v[%d:%d], v%d, s[24:27], %s offen sc1" % (r, r+1, r+2, soff), "poll%d" % r)
def poll_check(a, r, soff):
    a.wvm("poll%d" % r)
    lp, ok = a.label("spin"), a.label("ok")
    a("s_movk_i32 s63, %d\n%s:" % (SPIN, lp))
    a("v_cmp_ne_u32 vcc, s80, v%d\nv_cmp_ne_u32 s[84:85], s62, v%d\ns_or_b64 vcc, vcc, s[84:85]\ns_cbranch_vccz %s" % (r, r+1, ok))
    a("s_sub_u32 s63, s63, 1\ns_cmp_eq_u32 s63, 0\ns_cbranch_scc1 %s" % ok)
    if a.opt.get("sleep"): a("s_sleep %d" % a.opt["sleep"])
    a("buffer_load_dwordx2 v[%d:%d], v%d, s[24:27], %s offen sc1\ns_waitcnt vmcnt(0)\ns_branch %s\n%s:" % (r, r+1, r+2, soff, lp, ok))
def flag_store(a, soff):
    l = a.label("nf")
    a("s_barrier\ns_cmp_lg_u32 s44, 0\ns_cbranch_scc1 %s" % l)
    a("v_mov_b32 v186, s80\nv_mov_b32 v187, s62\nv_mov_b32 v188, 0\ns_mov_b64 s[84:85], exec\ns_mov_b64 exec, 1")
    a("buffer_store_dwordx2 v[186:187], v188, s[24:27], %s offen sc1\ns_mov_b64 exec, s[84:85]\n%s:" % (soff, l))

NONCE = "s_waitcnt lgkmcnt(0)\ns_mul_i32 s80, s80, 0x9E3779B1\ns_add_u32 s80, s80, 0x7F4A7C15\ns_xor_b32 s62, s80, 0x5bd1e995\ns_mul_i32 s62, s62, 0x85EBCA6B"
def flag_addrs(a):
    y_coords(a)
    a("s_lshl_b32 s60, s81, 9\ns_add_u32 s60, s60, 0x%x" % FX)
    a("s_mul_i32 s61, s49, 3\ns_lshr_b32 s61, s61, 1\ns_lshl_b32 s61, s61, 10\ns_add_u32 s61, s61, 0x%x" % FT)
def x_touch(a, what):
    a("s_lshl_b32 s50, s46, 2\ns_add_u32 s50, s50, s44\ns_lshl_b32 s50, s50, 13\nv_lshlrev_b32 v189, 7, v1")
    if what & 1:
        srd(a, 96, 12, 640*640*2)
        a.vmi("buffer_load_dword v190, v189, s[96:99], s50 offen", "xt")
    if what & 2:
        srd(a, 96, 4, 2048*640*2)
        a("s_mul_i32 s51, s45, 327680\ns_min_u32 s50, s50, %d\ns_add_u32 s50, s50, s51" % (39*8192))
        l = a.label("nt")
        a("s_cmp_ge_u32 s46, 10\ns_cbranch_scc1 %s\nbuffer_load_dword v191, v189, s[96:99], s50 offen\n%s:" % (l, l))
def gen_persist(opt):
    out = HDR + "; @launch grid=(256,1,1) block=(256,1,1) lds=163840\n"
    out += '.amdgcn_target "amdgcn-amd-amdhsa--gfx950"\n'
    a = Asm(opt); sc = " sc1"
    prologue(a, 256, "L_end")
    a("s_cmp_ge_u32 s46, 24\ns_cbranch_scc1 L_x" if opt.get("mix", 1) else "s_cmp_ge_u32 s45, 6\ns_cbranch_scc1 L_x")
    t_coords(a); stage_d_addr(a); ptrs_ready(a); stage_d_loads(a); a.stamp(10, True); ws_setup(a); t_setup(a)
    vp = opt.get("vpre", 1)
    if opt.get("xtp") == 0: x_touch(a, opt["xt"])
    for st in range(vp): t_vload(a, st)
    flag_addrs(a); stage_d_raddr(a)
    if "at" in opt: a_touch_addr(a)
    a("s_mul_i32 s59, s47, 3072\ns_add_u32 s59, s59, 0x%x\ns_lshl_b32 s50, s48, 7\ns_add_u32 s58, s59, s50\ns_mul_i32 s50, s44, 768\ns_add_u32 s59, s59, s50" % FD)
    a("s_lshl_b32 s89, s48, 10\ns_lshl_b32 s50, s47, 7\ns_add_u32 s89, s89, s50\ns_add_u32 s89, s89, 0x%x" % FT)
    a(NONCE)
    stage_d_compute(a, sc)
    a.stamp(2)
    if opt.get("xtp") == 1: x_touch(a, opt["xt"])
    vm = opt.get("vmid", 4)
    for st in range(vp, vm): t_vload(a, st)
    a.wvm("dst")
    flag_store(a, "s58"); a.stamp(3)
    if opt.get("xtp") == 2: x_touch(a, opt["xt"])
    vl = opt.get("vlate", 8)
    for st in range(vm, vl): t_vload(a, st)
    ch = opt.get("ch", 0)
    if ch:
        ent = []
        for c in range(vl, RV, ch):
            poll_issue(a, 180, 6, "s59")
            for st in range(c, c+ch): t_vload(a, st)
            a.wvm("poll180")
            if c + ch >= RV: break
            a("v_cmp_ne_u32 vcc, s80, v180\nv_cmp_ne_u32 s[84:85], s62, v181\ns_or_b64 vcc, vcc, s[84:85]\ns_cbranch_vccz L_t%d" % (c+ch))
            ent.append((c+ch, list(a.vm), set(a.closed)))
        poll_check(a, 180, "s59")
        ent = [(RV, list(a.vm), set(a.closed))] + ent
        for i, (vd, vm, cl) in enumerate(ent):
            a.vm, a.closed, a.lg = vm, cl, []
            if i: a("L_t%d:" % vd)
            a.stamp(4)
            stage_t_main(a, sc, sc, vd, pre_store=lambda: poll_issue(a, 180, 4, "s60"))
            assert a.vm[-4:] == ["poll180", "tst", "tst", "tst"], a.vm
            if i + 1 < len(ent): a("s_mov_b32 s58, s89\ns_branch L_pub")
    else:
        poll_issue(a, 180, 6, "s59")
        vd = vl if opt.get("vcut") else RV
        for st in range(vl, vd): t_vload(a, st)
        poll_check(a, 180, "s59")
        a.stamp(4)
        stage_t_main(a, sc, sc, vd, pre_store=lambda: poll_issue(a, 180, 4, "s60"))
    a("s_mov_b32 s58, s89")
    assert a.vm[-4:] == ["poll180", "tst", "tst", "tst"], a.vm
    a("s_branch L_pub\nL_x:"); a.vm = []; a.lg = []
    stage_x(a, sc, pre_store=lambda: poll_issue(a, 180, 4, "s60"))
    a("s_lshl_b32 s58, s47, 9\ns_lshl_b32 s50, s48, 7\ns_add_u32 s58, s58, s50\ns_add_u32 s58, s58, 0x%x" % FX)
    a("L_pub:"); a.stamp(7)
    x0, x1, x2 = opt.get("x0", 0), opt.get("x1", 6), opt.get("x2", 10)
    if x0:
        a("s_mov_b32 s11, s58"); y_setup(a)
        a.vm = ["poll180"] + ["pst"]*3
        a.wvm("poll180")
        a("v_cmp_ne_u32 vcc, s80, v180\nv_cmp_ne_u32 s[84:85], s62, v181\ns_or_b64 vcc, vcc, s[84:85]\ns_cbranch_vccnz L_slow")
        a.stamp(9)
        for ks in range(x0): y_xload(a, ks, sc)
        a.wvm("pst"); a.stamp(8); vm1 = list(a.vm)
        flag_store(a, "s11"); a("s_branch L_merge\nL_slow:")
        a.wall(); a.stamp(8); flag_store(a, "s11"); poll_check(a, 180, "s60"); a.stamp(9)
        for ks in range(x0): y_xload(a, ks, sc)
        assert a.vm == vm1
        a("L_merge:")
    else:
        a.wall(); a.stamp(8)
        flag_store(a, "s58")
        y_setup(a)
        poll_check(a, 180, "s60"); a.stamp(9)
    for ks in range(x0, x1): y_xload(a, ks, sc)
    EP = "v_mov_b32 v186, s80\nv_mov_b32 v188, 0\ns_mov_b32 s60, 0x%x\ns_mov_b64 exec, 1\nbuffer_store_dword v186, v188, s[24:27], s60 offen sc1\ns_mov_b64 exec, -1" % FL
    a("s_or_b32 s54, s2, s44")
    def early():
        l = a.label("e2")
        a("s_cmp_lg_u32 s54, 0\ns_cbranch_scc1 %s\nv_cmp_ne_u32 vcc, s80, v180\nv_cmp_ne_u32 s[84:85], s62, v181\ns_or_b64 vcc, vcc, s[84:85]\ns_cbranch_vccnz %s" % (l, l))
        a(EP + "\ns_mov_b32 s54, 1\n%s:" % l)
    ych = opt.get("ych", x2 - x1); ent = []; c = x1
    while True:
        poll_issue(a, 180, 16, "s61")
        e = min(c + ych, x2)
        for ks in range(c, e): y_xload(a, ks, sc)
        if e >= x2: break
        a.wvm("poll180")
        a("v_cmp_ne_u32 vcc, s80, v180\nv_cmp_ne_u32 s[84:85], s62, v181\ns_or_b64 vcc, vcc, s[84:85]\ns_cbranch_vccz L_y%d" % e)
        ent.append((e, list(a.vm), set(a.closed))); c = e
    a.stamp(10)
    poll_check(a, 180, "s61")
    ent = [(x2, list(a.vm), set(a.closed))] + ent
    for i, (xd, vm, cl) in enumerate(ent):
        a.vm, a.closed, a.lg = vm, cl, []
        if i: a("L_y%d:" % xd)
        a.stamp(11)
        l = a.label("e1")
        a("s_cmp_lg_u32 s54, 0\ns_cbranch_scc1 %s\ns_mov_b32 s60, 0x%x" % (l, FX))
        poll_issue(a, 180, 64, "s60"); a.vm.pop()
        a("%s:" % l)
        stage_y_main(a, sc, xd, early)
        if i + 1 < len(ent): a("s_branch L_yend")
    a("L_yend:"); a.vm = []
    a("s_cmp_lg_u32 s54, 0\ns_cbranch_scc1 L_fin")
    a("s_mov_b32 s60, 0x%x" % FX)
    poll_issue(a, 180, 64, "s60"); a.wall(); poll_check(a, 180, "s60")
    a(EP)
    a("L_fin:"); a.stamp(14)
    if not opt.get("nowait") or opt.get("stamps"): a.wall()
    write_stamps(a, 0); a("L_end:\ns_endpgm")
    out += head(KN) + a.text() + kd(KN, 192+160, 192)
    return out

if __name__ == "__main__":
    opt = {}
    mode = sys.argv[1]; outp = sys.argv[2]
    for kv in sys.argv[3:]:
        k, v = kv.split("="); opt[k] = int(v) if v.lstrip("-").isdigit() else " " + v.replace("+", " ")
    open(outp, "w").write(globals()["gen_" + mode](opt))
```

```python
import sys
KN = "standalone__weight_only_int_quip__prompt_kernel"
WQ, TF, XF, FL, ST = 0x0, 0x200000, 0x400000, 0x700000, 0x780000
WS_BYTES = 0x800000

class Asm:
    def __init__(s, opt):
        s.L = []; s.vm = []; s.lg = []; s.opt = opt; s.nst = 0; s.uid = 0; s.closed = set()
    def __call__(s, t):
        for x in t.split("\n"):
            x = x.strip()
            if x: s.L.append(x if x.endswith(":") else "    " + x)
    def vmi(s, t, tag):
        assert tag not in s.closed, tag
        s(t); s.vm.append(tag)
    def lgi(s, t, tag): s(t); s.lg.append(tag)
    def _n(s, q, tags):
        idx = [i for i, t in enumerate(q) if t in tags]
        if not idx: return None
        n = len(q) - 1 - max(idx)
        del q[:max(idx) + 1]
        return n
    def wvm(s, *tags):
        s.closed.update(t for t in tags if not t.startswith('poll'))
        n = s._n(s.vm, tags)
        if n is not None: s("s_waitcnt vmcnt(%d)" % min(n, 63))
    def wlg(s, *tags):
        n = s._n(s.lg, tags)
        if n is not None: s("s_waitcnt lgkmcnt(%d)" % min(n, 15))
    def wall(s, vm=True, lg=True):
        s("s_waitcnt" + (" vmcnt(0)" if vm else "") + (" lgkmcnt(0)" if lg else ""))
        if vm: s.vm = []
        if lg: s.lg = []
    def stamp(s, i, early=False):
        if s.opt.get("st0") and i in (9, 10) and not early: return
        if early and not s.opt.get("st0"): return
        if s.opt.get("stamps"):
            s("s_memrealtime s[82:83]"); s.wall(vm=False); s("s_mov_b32 s%d, s82" % (64 + i))
    def label(s, b): s.uid += 1; return "L_%s_%d" % (b, s.uid)
    def text(s): return "\n".join(s.L) + "\n"

def srd(a, d, lo, nbytes):
    a("s_mov_b32 s%d, s%d\ns_and_b32 s%d, s%d, 0xffff\ns_mov_b32 s%d, 0x%x\ns_mov_b32 s%d, 0x20000" % (d, lo, d+1, lo+1, d+2, nbytes, d+3))

def prologue(a, nwg, end):
    a("s_cmp_ge_u32 s2, %d\ns_cbranch_scc1 %s" % (nwg, end))
    if a.opt.get("stamps"):
        for i in range(8): a("s_mov_b64 s[%d:%d], 0" % (64+2*i, 65+2*i))
    a.stamp(0)
    a("s_load_dwordx16 s[4:19], s[0:1], 0\ns_load_dwordx2 s[20:21], s[0:1], 64")
    a("v_lshrrev_b32 v2, 6, v0\nv_and_b32 v1, 63, v0\ns_and_b32 s45, s2, 7\nv_readfirstlane_b32 s44, v2\ns_lshr_b32 s46, s2, 3")
    if a.opt.get("xperm"): a("s_lshr_b32 s50, s45, 1\ns_and_b32 s50, s50, 2\ns_xor_b32 s45, s45, s50")
    a("v_lshlrev_b32 v10, 4, v1")
    ct = a.opt.get("ct", 0)
    if ct:
        a({1: "s_cmp_ge_u32 s46, 8\ns_cbranch_scc1 L_nct\ns_lshl_b32 s50, s46, 12",
           2: "s_cmp_lt_u32 s46, 24\ns_cbranch_scc1 L_nct\ns_sub_u32 s50, s46, 24\ns_lshl_b32 s50, s50, 12",
           3: "s_cmp_lt_u32 s46, 16\ns_cbranch_scc1 L_nct\ns_and_b32 s50, s46, 7\ns_lshl_b32 s50, s50, 12"}[ct])
        a("v_lshrrev_b32 v188, 3, v0\nv_lshlrev_b32 v188, 7, v188\nv_add_u32 v188, s50, v188\ns_getpc_b64 s[50:51]\nL_pc:")
        a("v_min_u32 v188, L_end-L_pc, v188\nv_mov_b32 v189, s51\nv_add_co_u32 v188, vcc, s50, v188\nv_addc_co_u32 v189, vcc, 0, v189, vcc")
        a("global_load_dword v191, v[188:189], off\nL_nct:")
def ptrs_ready(a):
    a.stamp(9, True)
    a("s_waitcnt lgkmcnt(0)")
def ws_setup(a):
    srd(a, 24, 20, WS_BYTES)
    a("s_add_u32 s22, s20, 0x%x\ns_addc_u32 s23, s21, 0\ns_load_dword s80, s[22:23], 0" % FL)

def write_stamps(a, kidx):
    if not a.opt.get("stamps"): return
    a.stamp(15)
    l = a.label("nost")
    a("s_cmp_lg_u32 s44, 0\ns_cbranch_scc1 %s" % l)
    a("s_lshl_b32 s50, s2, 6\ns_add_u32 s50, s50, 0x%x" % (ST + kidx*0x4000))
    a("v_mov_b32 v2, 0")
    for i in range(4):
        for k in range(4): a("v_mov_b32 v%d, s%d" % (4+k, 64+4*i+k))
        a("buffer_store_dwordx4 v[4:7], v2, s[24:27], s50 offen offset:%d\ns_nop 1" % (16*i))
    a("s_waitcnt vmcnt(0)")
    if "pace" in a.opt:
        k = a.opt["pace"]; lp = a.label("pace")
        a("s_cmp_eq_u32 s%d, 0\ns_cselect_b32 s50, s64, s%d\ns_add_u32 s50, s50, 4000\n%s:\ns_sleep 2\ns_memrealtime s[82:83]\ns_waitcnt lgkmcnt(0)\ns_sub_u32 s51, s82, s50\ns_cmp_lt_i32 s51, 0\ns_cbranch_scc1 %s" % (64+k, 64+k, lp, lp))
    a("%s:" % l)

def t_coords(a):
    if a.opt.get("mix", 1):
        a("s_mul_i32 s50, s46, 43\ns_lshr_b32 s50, s50, 8\ns_mul_i32 s51, s50, 6\ns_sub_u32 s51, s46, s51")
        a("s_lshr_b32 s52, s45, 2\ns_lshl_b32 s47, s52, 2\ns_add_u32 s47, s47, s50\ns_and_b32 s48, s45, 3\ns_mul_i32 s48, s48, 6\ns_add_u32 s48, s48, s51")
        r = a.opt.get("rot", 1)
        a({2: "s_mov_b32 s51, 0", 3: "s_and_b32 s51, s51, 1", 4: "s_lshr_b32 s51, s51, 1"}.get(r, "s_lshl_b32 s51, s51, 1"))
        a("s_mul_i32 s91, s50, 3\ns_add_u32 s91, s91, s51\ns_add_u32 s91, s91, s52")
    else:
        a("s_cmp_ge_u32 s45, 3\ns_cselect_b32 s50, 1, 0\ns_mul_i32 s51, s50, 3\ns_sub_u32 s51, s45, s51")
        a("s_lshl_b32 s47, s50, 2\ns_lshr_b32 s52, s46, 3\ns_add_u32 s47, s47, s52")
        a("s_lshl_b32 s48, s51, 3\ns_and_b32 s52, s46, 7\ns_add_u32 s48, s48, s52")
        a("s_and_b32 s50, s47, 3\ns_mul_i32 s50, s50, 3\ns_and_b32 s51, s48, 7\ns_mul_i32 s51, s51, 3\ns_lshr_b32 s51, s51, 1\ns_add_u32 s91, s50, s51")
        if a.opt.get("rot", 1) == 2: a("s_lshr_b32 s51, s47, 2\ns_add_u32 s91, s50, s51")
    a("s_cmp_ge_u32 s91, 12\ns_cselect_b32 s51, 12, 0\ns_sub_u32 s91, s91, s51")
    if not a.opt.get("rot", 1): a("s_mov_b32 s91, 0")
def x_coords(a):
    if a.opt.get("mix", 1):
        a("s_sub_u32 s50, s46, 24\ns_lshr_b32 s51, s50, 2\ns_lshl_b32 s47, s45, 1\ns_add_u32 s47, s47, s51\ns_and_b32 s48, s50, 3")
        a("s_mul_i32 s91, s48, 5\ns_lshr_b32 s91, s91, 1\ns_mul_i32 s51, s51, 5\ns_add_u32 s91, s91, s51\ns_add_u32 s91, s91, s45")
        a("s_cmp_ge_u32 s91, 10\ns_cselect_b32 s51, 10, 0\ns_sub_u32 s91, s91, s51")
    else:
        a("s_sub_u32 s47, s45, 6\ns_lshl_b32 s47, s47, 3\ns_lshr_b32 s50, s46, 2\ns_add_u32 s47, s47, s50\ns_and_b32 s48, s46, 3")
        a("s_mul_i32 s50, s48, 5\ns_lshr_b32 s50, s50, 1\ns_and_b32 s51, s47, 7\ns_add_u32 s91, s50, s51")
    a("s_cmp_ge_u32 s91, 10\ns_cselect_b32 s51, 10, 0\ns_sub_u32 s91, s91, s51")
    if not a.opt.get("xrot", a.opt.get("rot", 1)): a("s_mov_b32 s91, 0")

RV = 10; WR = RV*4096; DL = 8*4096
def stage_d_addr(a):
    a("v_lshrrev_b32 v2, 4, v1\ns_mul_i32 s50, s44, 20\nv_add_u32 v2, s50, v2\nv_and_b32 v3, 15, v1\ns_movk_i32 s53, 6144")
    for p in range(5):
        a("v_add_u32 v4, %d, v2\nv_and_b32 v5, 15, v4\nv_xor_b32 v5, v5, v3\nv_mul_u32_u24 v4, s53, v4\nv_lshl_add_u32 v%d, v5, 4, v4" % (4*p, 152+p))
        if 0 < p < 4: a("v_subrev_u32 v%d, %d, v%d" % (152+p, 1024*p, 152+p))
    a("s_mul_i32 s51, s47, %d\ns_lshl_b32 s52, s48, 8\ns_add_u32 s92, s51, s52" % (80*6144))
    a("s_mul_i32 s57, s44, %d\ns_add_u32 m0, s57, %d" % (WR, DL))
    a("v_and_b32 v157, 48, v1")
    a("s_and_b32 s52, s44, 1\ns_lshl_b32 s52, s52, 6\ns_lshl_b32 s53, s48, 7\ns_add_u32 s52, s52, s53")
    for u in range(3):
        a("s_lshr_b32 s53, s44, 1\ns_add_u32 s53, s53, %d\ns_min_u32 s53, s53, 4\ns_mul_i32 s54, s47, 5\ns_add_u32 s53, s53, s54\ns_lshr_b32 s53, s53, 3" % (2*u))
        a("s_mul_i32 s53, s53, 3072\ns_add_u32 s%d, s53, s52" % (93+u))
def stage_d_loads(a):
    if a.opt.get("szf"): sz_loads(a)
    srd(a, 28, 6, 640*1536*4)
    for p in range(5):
        if p == 4: a("s_add_u32 m0, s57, %d\ns_nop 0" % (DL + 4096))
        a.vmi("buffer_load_dwordx4 v%d, s[28:31], s92 offen offset:%d%s lds" % (152+p, 1024*(p & 3) if p < 4 else 0, a.opt.get("qnt", "")), "qw")
    if not a.opt.get("szf"): sz_loads(a)
def sz_loads(a):
    srd(a, 36, 8, 5*1536*2); srd(a, 40, 10, 5*1536*2)
    for u in range(3):
        a.vmi("buffer_load_dwordx4 v[%d:%d], v157, s[36:39], s%d offen" % (128+8*u, 131+8*u, 93+u), "sz")
        a.vmi("buffer_load_dwordx4 v[%d:%d], v157, s[40:43], s%d offen" % (132+8*u, 135+8*u, 93+u), "sz")
def stage_d_raddr(a):
    a("v_and_b32 v11, 15, v1\nv_lshrrev_b32 v12, 4, v1\nv_lshlrev_b32 v12, 1, v12\ns_and_b32 s50, s44, 1\ns_lshl_b32 s50, s50, 3\nv_add_u32 v12, s50, v12\nv_xor_b32 v12, v12, v11")
    a("s_lshr_b32 s50, s44, 1\ns_lshl_b32 s50, s50, 4\nv_add_u32 v11, s50, v11\ns_movk_i32 s51, 3277\ns_mov_b32 s52, %d" % (WR - 5120))
    for u in range(3):
        a("v_add_u32 v13, %d, v11\nv_min_u32 v13, 79, v13\nv_mul_u32_u24 v14, s51, v13\nv_lshrrev_b32 v14, 16, v14\nv_mul_u32_u24 v14, s52, v14\nv_lshl_add_u32 v13, v13, 8, v14" % (32*u))
        a("v_add_u32 v13, %d, v13\nv_lshl_add_u32 v%d, v12, 4, v13\nv_xor_b32 v%d, 16, v%d" % (DL, 152+2*u, 153+2*u, 152+2*u))
    a("s_mul_i32 s50, s47, 5\ns_lshr_b32 s51, s44, 1\ns_add_u32 s50, s50, s51\ns_mul_i32 s50, s50, 48\ns_lshl_b32 s51, s48, 1\ns_add_u32 s50, s50, s51")
    a("s_and_b32 s51, s44, 1\ns_add_u32 s50, s50, s51\ns_lshl_b32 s50, s50, 10\ns_add_u32 s92, s50, %d\ns_add_u32 s93, s92, %d\ns_add_u32 s94, s92, %d" % (WQ, 96*1024, 192*1024))
def stage_d_compute(a, sc):
    def prep(u):
        s0, z0, t = 128+8*u, 132+8*u, 48+16*u
        for k in range(4):
            a("v_lshlrev_b32 v%d, 16, v%d\nv_and_b32 v%d, 0xffff0000, v%d" % (t+2*k, s0+k, t+2*k+1, s0+k))
            a("v_lshlrev_b32 v%d, 16, v%d\nv_and_b32 v%d, 0xffff0000, v%d" % (t+8+2*k, z0+k, t+8+2*k+1, z0+k))
        for k in range(0, 8, 2):
            a("v_pk_mul_f32 v[%d:%d], v[%d:%d], v[%d:%d] neg_lo:[1,0] neg_hi:[1,0]" % (t+8+k, t+9+k, t+8+k, t+9+k, t+k, t+k+1))
    if a.opt.get("szf"):
        a.wvm("sz"); prep(0); prep(1); prep(2); a.wvm("qw")
    else: a.wvm("qw", "sz"); prep(0)
    a("s_barrier"); a.stamp(1)
    for u in range(3):
        q = 16 + 8*u
        a.lgi("ds_read_b128 v[%d:%d], v%d" % (q, q+3, 152+2*u), "dq%d" % u)
        a.lgi("ds_read_b128 v[%d:%d], v%d" % (q+4, q+7, 153+2*u), "dq%d" % u)
    skip = a.label("dskip")
    for u in range(3):
        q = 16 + 8*u; t = 48+16*u; o = 100 + 4*u
        if u == 2: a.wlg("dq2"); a("s_cmp_ge_u32 s44, 2\ns_cbranch_scc1 %s" % skip)
        if u and not a.opt.get('szf'): prep(u)
        a.wlg("dq%d" % u)
        for k in range(8): a("v_cvt_f32_i32 v%d, v%d" % (q+k, q+k))
        for k in range(0, 8, 2): a("v_pk_fma_f32 v[%d:%d], v[%d:%d], v[%d:%d], v[%d:%d]" % (q+k, q+k+1, q+k, q+k+1, t+k, t+k+1, t+8+k, t+9+k))
        for k in range(4): a("v_cvt_pk_bf16_f32 v%d, v%d, v%d" % (o+k, q+2*k, q+2*k+1))
        a("buffer_store_dwordx4 v[%d:%d], v10, s[24:27], s%d offen%s" % (o, o+3, 92+u, sc))
        if u < 2: a.vm.append("dst")
    a("%s:" % skip)

def t_setup(a):
    srd(a, 32, 14, 1536*1536*2)
    a("v_lshrrev_b32 v6, 3, v1\nv_and_b32 v7, 7, v1\nv_lshrrev_b32 v8, 2, v1\nv_and_b32 v8, 4, v8\nv_xor_b32 v7, v7, v8")
    a("s_movk_i32 s50, 3072\nv_mul_u32_u24 v6, s50, v6\nv_lshl_add_u32 v2, v7, 4, v6")
    for p in range(1, 4): a("v_add_u32 v%d, %d, v2" % (2+p, p*(24576-1024)))
    a("v_lshrrev_b32 v11, 4, v1\nv_lshlrev_b32 v11, 3, v11\nv_bfe_u32 v12, v1, 2, 2\nv_add_u32 v11, v11, v12\nv_lshlrev_b32 v11, 7, v11")
    a("v_and_b32 v12, 3, v1\nv_lshrrev_b32 v13, 1, v1\nv_and_b32 v13, 4, v13\nv_xor_b32 v12, v12, v13\nv_lshl_add_u32 v11, v12, 4, v11")
    a("s_mov_b32 s53, s57")
    for b in range(4):
        a("s_add_u32 s50, s44, %d\ns_and_b32 s51, s50, 1\ns_lshl_b32 s51, s51, 3\ns_add_u32 s51, s51, s53\ns_and_b32 s50, s50, 2\ns_lshl_b32 s50, s50, 5" % b)
        a("v_xor_b32 v%d, s50, v11\nv_add_u32 v%d, s51, v%d" % (6+b, 6+b, 6+b))
    a("s_mul_i32 s55, s44, %d\ns_lshl_b32 s50, s48, 7\ns_add_u32 s55, s55, s50" % (12*32*3072))
    a("s_mul_i32 s56, s47, %d\ns_mul_i32 s50, s44, %d\ns_add_u32 s56, s56, s50\ns_add_u32 s56, s56, %d" % (5*48*1024, 12*1024, WQ))
    a("s_mov_b32 s50, s91")
    a("s_mul_i32 s86, s50, 98304\ns_add_u32 s86, s86, s55\ns_add_u32 s87, s55, %d\ns_lshl_b32 s88, s50, 10\ns_add_u32 s88, s88, s56\ns_add_u32 s90, s56, 12288" % (12*98304))
def t_vload1(a, s, p, setm0=True):
    if p == 0 and s > 0: a("s_add_u32 s86, s86, 98304\ns_cmp_eq_u32 s86, s87\ns_cselect_b32 s86, s55, s86")
    if setm0: a("s_add_u32 m0, s57, %d\ns_nop 0" % ((s % RV)*4096))
    a.vmi("buffer_load_dwordx4 v%d, s[32:35], s86 offen offset:%d%s lds" % (2+p, 1024*p, a.opt.get("vnt", "")), "V%d" % s)
def t_vload(a, s):
    for p in range(4): t_vload1(a, s, p, p == 0)
def t_aload1(a, s, b, sc):
    NA = a.opt.get("na", 4)
    r = (s % NA)*20 + 4*b
    if a.opt.get("adiag") and s >= NA: return
    if b == 0 and s > 0: a("s_add_u32 s88, s88, 1024\ns_cmp_eq_u32 s88, s90\ns_cselect_b32 s88, s56, s88")
    if b: a("s_add_u32 s50, s88, %d" % (b*48*1024))
    a.vmi("buffer_load_dwordx4 a[%d:%d], v10, s[24:27], %s offen%s" % (r, r+3, "s50" if b else "s88", sc), "A%d" % s)
def a_touch_addr(a):
    at = a.opt["at"]; skip = max(0, (12-at)*40 - 384)
    a("s_mul_i32 s50, s46, 43\ns_lshr_b32 s50, s50, 8\ns_mul_i32 s50, s50, 6\ns_sub_u32 s50, s46, s50\ns_lshl_b32 s50, s50, 6\ns_add_u32 s50, s50, %d" % (at*40))
    a("v_add_u32 v184, s50, v1\nv_min_u32 v184, 479, v184\ns_movk_i32 s50, 1639\nv_mul_u32_u24 v185, s50, v184\nv_lshrrev_b32 v185, 16, v185\nv_mul_u32_u24 v183, 40, v185\nv_sub_u32 v184, v184, v183")
    a("v_add_u32 v185, s91, v185\nv_subrev_u32 v183, 12, v185\nv_min_u32 v185, v185, v183\nv_lshlrev_b32 v185, 10, v185")
    a("v_lshrrev_b32 v183, 3, v184\nv_and_b32 v184, 7, v184\nv_lshl_add_u32 v185, v184, 7, v185\ns_mov_b32 s50, 49152\nv_mul_u32_u24 v183, s50, v183\nv_add_u32 v185, v185, v183")
def t_bread(a, s, b, t):
    r = 96 + (s & 1)*16 + 4*b + 2*t
    a.lgi("ds_read_b64_tr_b16 v[%d:%d], v%d offset:%d" % (r, r+1, 6+b, (s % RV)*4096 + t*512), "B%d" % s)
def stage_t_main(a, ldsc, stsc, vdone, pre_store=None):
    ACC = 16
    NA = a.opt.get("na", 4)
    vin = a.opt.get("vin", 0)
    for s in range(RV):
        if s >= vdone and (not vin or s < a.opt.get("vmin", 0)): t_vload(a, s)
        if s == a.opt.get("at", -1): a.vmi("buffer_load_dword v184, v185, s[24:27], s56 offen%s" % ldsc, "at")
        if s < NA:
            for b in range(5): t_aload1(a, s, b, ldsc)
    a.wvm("V0")
    for b in range(4):
        for t in range(2): t_bread(a, 0, b, t)
    vq = [(s, p) for s in range(max(vdone, a.opt.get('vmin', 0)) if vin else RV, 12) for p in range(4)]
    a("v_add_u32 v11, s57, v10")
    for b in range(1, 4):
        a("s_sub_u32 s50, s44, %d\ns_and_b32 s50, s50, 3\ns_mul_i32 s50, s50, %d\ns_add_u32 s50, s50, %d\nv_add_u32 v%d, s50, v10" % (b, WR, (b-1)*5120, 11+b))
    for s in range(12):
        a.wvm("A%d" % s, "V%d" % (s+1)); a.wlg("B%d" % s)
        if s == 0: a.stamp(5)
        order = [(b, db) for db in range(5) for b in range(4)] if s < 11 else [(b, db) for b in (1, 2, 3, 0) for db in range(5)]
        for n, (b, db) in enumerate(order):
            c = ACC + (b*5+db)*4; ar = (s % NA)*20 + 4*db; br = 96 + (s & 1)*16 + 4*b
            a("v_mfma_f32_16x16x32_bf16 v[%d:%d], a[%d:%d], v[%d:%d], %s" % (c, c+3, ar, ar+3, br, br+3, "0" if s == 0 else "v[%d:%d]" % (c, c+3)))
            if s+1 < 12 and n < 16 and (n & 1) == 0: t_bread(a, s+1, n >> 2, (n >> 1) & 1)
            if b == 3 and s + NA < 12: t_aload1(a, s+NA, db, ldsc)
            if b == 1 and db in ((0, 1, 2, 3) if vin == 1 else (0, 1, 2, 3, 4) if vin else (1, 3)) and vq and vq[0][0] - RV <= s: t_vload1(a, *vq.pop(0))
            if s == 11 and n >= 8:
                wb, wd = order[n-8]; c = ACC + (wb*5+wd)*4
                a.lgi("ds_write_b128 v11, v[%d:%d] offset:%d" % (c, c+3, (wb-1)*5120 + wd*1024), "rw")
    assert not vq
    a("s_nop 1")
    for wb, wd in order[12:15]:
        c = ACC + (wb*5+wd)*4
        a.lgi("ds_write_b128 v11, v[%d:%d] offset:%d" % (c, c+3, (wb-1)*5120 + wd*1024), "rw")
    a.wall(vm=False); a("s_barrier")
    a.stamp(6)
    for db in range(5):
        for b in range(3):
            r = 36 + (db*3+b)*4
            a.lgi("ds_read_b128 v[%d:%d], v%d offset:%d" % (r, r+3, 12+b, db*1024), "rr%d" % db)
    if pre_store: pre_store()
    a("s_lshl_b32 s50, s48, 2\ns_add_u32 s50, s50, s44\ns_mul_i32 s50, s50, 20\ns_lshr_b32 s51, s47, 1\ns_mul_i32 s51, s51, 5\ns_add_u32 s50, s50, s51")
    a("s_lshl_b32 s50, s50, 10\ns_add_u32 s50, s50, %d\ns_and_b32 s51, s47, 1\ns_lshl_b32 s52, s51, 11\ns_add_u32 s52, s52, s50" % TF)
    a("s_lshl_b32 s51, s51, 9\ns_add_u32 s51, s51, s50\ns_add_u32 s51, s51, 4096\nv_lshlrev_b32 v3, 3, v1")
    for db in range(5):
        a.wlg("rr%d" % db)
        c = ACC + db*4; r = 36 + db*12
        for k in range(0, 4, 2):
            a("v_pk_add_f32 v[%d:%d], v[%d:%d], v[%d:%d]" % (c+k, c+k+1, c+k, c+k+1, r+k, r+k+1))
            a("v_pk_add_f32 v[%d:%d], v[%d:%d], v[%d:%d]" % (r+4+k, r+5+k, r+4+k, r+5+k, r+8+k, r+9+k))
        for k in range(0, 4, 2):
            a("v_pk_add_f32 v[%d:%d], v[%d:%d], v[%d:%d]" % (c+k, c+k+1, c+k, c+k+1, r+4+k, r+5+k))
        o = 96 + 2*db
        a("v_cvt_pk_bf16_f32 v%d, v%d, v%d\nv_cvt_pk_bf16_f32 v%d, v%d, v%d" % (o, c, c+1, o+1, c+2, c+3))
        if db in (1, 3): a.vmi("buffer_store_dwordx4 v[%d:%d], v10, s[24:27], s52 offen offset:%d%s" % (o-2, o+1, (db >> 1)*1024, stsc), "tst")
        if db == 4: a.vmi("buffer_store_dwordx2 v[%d:%d], v3, s[24:27], s51 offen%s" % (o, o+1, stsc), "tst")

XS = 36864
def stage_x(a, stsc, pre_store=None):
    x_coords(a)
    a("s_movk_i32 s53, 1280\nv_lshrrev_b32 v11, 3, v1\ns_lshl_b32 s50, s44, 5\nv_add_u32 v11, s50, v11\nv_and_b32 v12, 7, v1\nv_lshrrev_b32 v13, 4, v1")
    for p in range(4):
        a("v_add_u32 v14, %d, v13\nv_and_b32 v14, 7, v14\nv_xor_b32 v14, v14, v12\nv_add_u32 v15, %d, v11\nv_mul_u32_u24 v15, s53, v15" % (4*p, 8*p))
        a("v_lshl_add_u32 v%d, v14, 4, v15" % (2+p))
        if p: a("v_subrev_u32 v%d, %d, v%d" % (2+p, 1024*p, 2+p))
    a("s_movk_i32 s54, 3277\ns_lshl_b32 s50, s44, 4")
    UR = [6, 7, 8, 9, 11]
    for p in range(5):
        a("v_add_u32 v12, %d, v1\nv_mul_u32_u24 v13, s54, v12\nv_lshrrev_b32 v13, 16, v13\nv_mul_u32_u24 v14, 20, v13\nv_sub_u32 v12, v12, v14" % (64*p))
        a("v_lshrrev_b32 v14, 2, v13\nv_and_b32 v14, 2, v14\nv_xor_b32 v12, v12, v14\nv_add_u32 v13, s50, v13\nv_mul_u32_u24 v13, s53, v13\nv_lshl_add_u32 v%d, v12, 4, v13" % UR[p])
        if 0 < p < 4: a("v_subrev_u32 v%d, %d, v%d" % (UR[p], 1024*p, UR[p]))
    a("s_mul_i32 s55, s47, %d\ns_mul_i32 s56, s48, 320\ns_lshl_b32 s57, s44, 12\ns_mul_i32 s58, s44, 5120\ns_add_u32 s58, s58, 16384" % (128*1280))
    a("s_mov_b32 s50, s91")
    a("s_lshl_b32 s86, s50, 7\ns_add_u32 s86, s86, s55\ns_add_u32 s87, s55, 1280\ns_mul_i32 s88, s50, 81920\ns_add_u32 s88, s88, s56\ns_add_u32 s90, s56, 819200")
    def dma1(st, i):
        sl = (st % 4)*XS
        if i < 4:
            if i == 0 and st > 0: a("s_add_u32 s86, s86, 128\ns_cmp_eq_u32 s86, s87\ns_cselect_b32 s86, s55, s86")
            a("s_add_u32 m0, s57, %d\ns_nop 0" % sl)
            a.vmi("buffer_load_dwordx4 v%d, s[28:31], s86 offen offset:%d%s lds" % (2+i, 1024*i, a.opt.get("xnt", "")), "S%d" % st)
        else:
            p = i - 4
            if p == 0 and st > 0: a("s_add_u32 s88, s88, 81920\ns_cmp_eq_u32 s88, s90\ns_cselect_b32 s88, s56, s88")
            a("s_add_u32 m0, s58, %d\ns_nop 0" % (sl + (4096 if p == 4 else 0)))
            a.vmi("buffer_load_dwordx4 v%d, s[32:35], s88 offen offset:%d%s lds" % (UR[p], 1024*(p & 3) if p < 4 else 0, a.opt.get("unt", "")), "S%d" % st)
    def dma(st):
        for i in range(9): dma1(st, i)
    ptrs_ready(a); srd(a, 28, 4, 2048*640*2); srd(a, 32, 12, 640*640*2)
    XP = a.opt.get('xpre', 2)
    for st in range(XP): dma(st)
    a.stamp(10, True)
    dq = [(st, i) for st in range(XP, 10) for i in range(9)]
    free = 4
    ws_setup(a); flag_addrs(a)
    a("v_and_b32 v12, 15, v1\nv_lshrrev_b32 v13, 4, v1\nv_lshrrev_b32 v14, 1, v12\nv_xor_b32 v14, v14, v13\ns_lshr_b32 s50, s44, 1\ns_lshl_b32 s50, s50, 13")
    a("v_lshlrev_b32 v12, 7, v12\nv_lshl_add_u32 v12, v14, 4, v12\nv_add_u32 v176, s50, v12\nv_xor_b32 v177, 64, v176")
    a("v_add_u32 v178, %d, v176\nv_add_u32 v179, %d, v177" % (2*XS, 2*XS))
    a("v_lshlrev_b32 v12, 3, v13\nv_bfe_u32 v14, v1, 2, 2\nv_add_u32 v12, v12, v14\ns_movk_i32 s50, 320\nv_mul_u32_u24 v12, s50, v12\nv_and_b32 v14, 3, v1\nv_lshl_add_u32 v12, v14, 3, v12")
    a("s_and_b32 s50, s44, 1\ns_mul_i32 s51, s50, 160\ns_add_u32 s51, s51, 16384\nv_add_u32 v12, s51, v12\nv_and_b32 v13, 1, v13\nv_lshlrev_b32 v13, 5, v13")
    a("s_lshl_b32 s50, s50, 1\ns_sub_u32 s50, 1, s50\nv_mul_lo_u32 v13, v13, s50\nv_add_u32 v180, v12, v13\nv_sub_u32 v181, v12, v13")
    a("v_add_u32 v182, %d, v180\nv_add_u32 v183, %d, v181" % (2*XS, 2*XS))
    ACC = 16; FB = 96
    def reads(u):
        st, k = u >> 1, u & 1; sl = st % 4; hi = (sl >> 1)*2; lo = (sl & 1)*XS; fb = FB + 36*(u & 1)
        R = []
        for i in range(5):
            if i < 4: R.append("ds_read_b128 v[%d:%d], v%d offset:%d" % (fb+4*i, fb+4*i+3, 176+hi+k, lo + i*2048))
            for t in range(2):
                r = fb + 16 + 4*i + 2*t
                R.append("ds_read_b64_tr_b16 v[%d:%d], v%d offset:%d" % (r, r+1, 180+hi+(i & 1), lo + (32*k+4*t)*320 + 32*i))
        return R
    a(NONCE); a.wvm("S0"); a("s_barrier")
    a.stamp(1)
    for r in reads(0): a.lgi(r, "F0")
    for u in range(20):
        a.wlg("F%d" % u)
        R = reads(u+1) if u < 19 else []
        fb = FB + 36*(u & 1); n = 0
        for eb in range(5):
            for mb in range(4):
                c = ACC + (eb*4+mb)*4; ar = fb + 16 + 4*eb; br = fb + 4*mb
                a("v_mfma_f32_16x16x32_bf16 v[%d:%d], v[%d:%d], v[%d:%d], %s" % (c, c+3, ar, ar+3, br, br+3, "0" if u == 0 else "v[%d:%d]" % (c, c+3)))
                if n == 1 and (u & 1) and u < 19:
                    st = u >> 1
                    a.wvm("S%d" % (st+1)); a("s_nop 0" if a.opt.get("xnobar") else "s_barrier"); free = st + 5
                if n >= 1 and R:
                    r = R.pop(0)
                    if not a.opt.get("xnoread"): a.lgi(r, "F%d" % (u+1))
                if n % a.opt.get('xev', 4) == a.opt.get('xev', 4) - 1 and dq and dq[0][0] < free:
                    d = dq.pop(0)
                    if not a.opt.get("xnodma"): dma1(*d)
                n += 1
        assert not R
    a.stamp(6)
    assert not dq
    if pre_store: pre_store()
    a("s_lshl_b32 s50, s47, 3\ns_lshr_b32 s51, s44, 1\ns_lshl_b32 s51, s51, 2\ns_add_u32 s50, s50, s51\ns_mul_i32 s50, s50, 20\ns_mul_i32 s51, s48, 5\ns_add_u32 s50, s50, s51")
    a("s_lshl_b32 s50, s50, 10\ns_add_u32 s50, s50, %d\ns_and_b32 s51, s44, 1\ns_lshl_b32 s52, s51, 11\ns_add_u32 s52, s52, s50" % XF)
    a("s_lshl_b32 s51, s51, 9\ns_add_u32 s51, s51, s50\ns_add_u32 s51, s51, 4096\nv_lshlrev_b32 v3, 3, v1\ns_nop 3")
    for mb in range(4):
        o = 96 + 12*mb
        for eb in range(5):
            c = ACC + (eb*4+mb)*4
            a("v_cvt_pk_bf16_f32 v%d, v%d, v%d\nv_cvt_pk_bf16_f32 v%d, v%d, v%d" % (o+2*eb, c, c+1, o+2*eb+1, c+2, c+3))
            if eb in (1, 3): a.vmi("buffer_store_dwordx4 v[%d:%d], v10, s[24:27], s52 offen offset:%d%s" % (o+2*eb-2, o+2*eb+1, (eb >> 1)*1024, stsc), "xst")
            if eb == 4: a.vmi("buffer_store_dwordx2 v[%d:%d], v3, s[24:27], s51 offen%s" % (o+8, o+9, stsc), "xst")
        if mb < 3: a("s_add_u32 s52, s52, 20480\ns_add_u32 s51, s51, 20480")

def y_coords(a):
    a("s_lshr_b32 s81, s45, 1\ns_lshl_b32 s81, s81, 2\ns_lshr_b32 s50, s46, 3\ns_add_u32 s81, s81, s50")
    a("s_and_b32 s49, s45, 1\ns_lshl_b32 s49, s49, 3\ns_and_b32 s50, s46, 7\ns_add_u32 s49, s49, s50")
def y_setup(a):
    a("s_mov_b32 s47, s81\ns_mov_b32 s48, s49")
    srd(a, 28, 16, 2048*1536*2)
    a("v_lshlrev_b32 v11, 3, v1\nv_add_u32 v12, 4096, v11\nv_add_u32 v13, 61440, v10\nv_add_u32 v14, 61440, v11")
    a("s_lshl_b32 s55, s47, 3\ns_lshl_b32 s50, s44, 1\ns_add_u32 s55, s55, s50\ns_mul_i32 s55, s55, 20480\ns_add_u32 s55, s55, %d" % XF)
    a("s_mul_i32 s56, s48, 122880\ns_add_u32 s56, s56, %d" % TF)
    for i in range(3):
        a("s_mul_i32 s50, s44, 3\ns_add_u32 s50, s50, %d\ns_and_b32 s51, s50, 1\ns_lshr_b32 s50, s50, 1\ns_mul_i32 s50, s50, 20480\ns_lshl_b32 s51, s51, 10\ns_add_u32 s%d, s50, s51" % (i, 57+i))
def y_xload1(a, ks, mb, sc):
    G, r = divmod(ks, 5)
    d = (ks*2+mb)*4
    a("s_add_u32 s50, s55, %d" % (mb*20480 + G*5120))
    if r < 4: a.vmi("buffer_load_dwordx4 a[%d:%d], v10, s[24:27], s50 offen offset:%d%s" % (d, d+3, r*1024, sc), "X%d" % ks)
    else:
        for h in range(2): a.vmi("buffer_load_dwordx2 a[%d:%d], v12, s[24:27], s50 offen offset:%d%s" % (d+2*h, d+2*h+1, h*512, sc), "X%d" % ks)
def y_xload(a, ks, sc):
    for mb in range(2): y_xload1(a, ks, mb, sc)
def y_tload1(a, st, i, sc):
    a("s_add_u32 m0, s%d, %d\ns_add_u32 s50, s56, m0" % (57+i, st*2048))
    a.vmi("buffer_load_dwordx4 v10, s[24:27], s50 offen%s lds" % sc, "T%d" % st)
def stage_y_main(a, sc, xdone, early=None):
    ACC = 16; FB = 64
    NT = a.opt.get("ytail", 0); K0 = 20 - NT
    q = [(min(2*st, K0) - 1.5, lambda st=st, i=i: y_tload1(a, st, i, sc)) for st in range(10) for i in range(3)]
    q += [(min(ks, K0) - a.opt.get("xlead", 0), lambda ks=ks, mb=mb: y_xload1(a, ks, mb, sc)) for ks in range(xdone, 20) for mb in range(2)]
    q = [f for d, f in sorted(q, key=lambda e: e[0])]
    for i in range(a.opt.get("ypre", 6)): q.pop(0)()
    ev = a.opt.get("yev", 4 if xdone >= 10 else 3)
    def rd(r, nb, ks): return "ds_read_b128 v[%d:%d], v%d offset:%d" % (r, r+3, 10 if nb < 3 else 13, (nb % 3)*20480 + ks*1024)
    def rd2(r, nb, ks):
        if ks % 5 < 4: return [rd(r, nb, ks)]
        return ["ds_read_b64 v[%d:%d], v%d offset:%d" % (r+2*h, r+2*h+1, 11 if nb < 3 else 14, (nb % 3)*20480 + ks*1024 + 512*h) for h in range(2)]
    def reads(ks): return [rd2(FB + 24*(ks & 1) + 4*nb, nb, ks) for nb in range(6)]
    def tb(P): return 112 + 8*NT*(P & 1)
    def treads(P): return [rd2(tb(P) + 4*(2*j+sub), 2*P+sub, K0+j) for j in range(NT) for sub in range(2)]
    def epi_addr():
        a("v_and_b32 v2, 15, v1\nv_lshrrev_b32 v3, 4, v1\ns_movk_i32 s52, 3072\nv_mul_u32_u24 v2, s52, v2\nv_lshl_add_u32 v2, v3, 4, v2")
        a("s_lshl_b32 s52, s47, 2\ns_add_u32 s52, s52, s44\ns_mul_i32 s52, s52, %d\ns_mul_i32 s53, s48, 192\ns_add_u32 s52, s52, s53\ns_add_u32 s53, s52, %d" % (32*3072, 16*3072))
    def epi(P, mb, o):
        E = []
        for sub in range(2):
            c = ACC + ((2*P+sub)*2+mb)*4
            E.append(lambda c=c, sub=sub: a("v_cvt_pk_bf16_f32 v%d, v%d, v%d\nv_cvt_pk_bf16_f32 v%d, v%d, v%d" % (o+2*sub, c, c+1, o+2*sub+1, c+2, c+3)))
        E.append(lambda: a.vmi("buffer_store_dwordx4 v[%d:%d], v2, s[28:31], s%d offen offset:%d%s" % (o, o+3, 52+mb, 64*P, a.opt.get("ysc", "")), "yst"))
        return E
    def mfma(nb, mb, ar, ks):
        c = ACC + (nb*2+mb)*4; br = (ks*2+mb)*4
        a("v_mfma_f32_16x16x32_bf16 v[%d:%d], v[%d:%d], a[%d:%d], %s" % (c, c+3, ar, ar+3, br, br+3, "0" if ks == 0 else "v[%d:%d]" % (c, c+3)))
    epi_addr()
    a.wvm("T0"); a("s_barrier")
    a.stamp(12)
    for rr in reads(0):
        for r in rr: a.lgi(r, "F0")
    for ks in range(K0):
        a.wvm("X%d" % ks); a.wlg("F%d" % ks)
        R = reads(ks+1) if ks < K0-1 else treads(0) if NT else []
        fb = FB + 24*(ks & 1); n = 0
        for nb in range(6):
            for mb in range(2):
                mfma(nb, mb, fb + 4*nb, ks)
                if n == 1 and (ks & 1) and ks < 19:
                    a.wvm(*["T%d" % t for t in (range((ks >> 1)+1, 10) if ks == K0-1 else [(ks >> 1)+1])]); a("s_barrier")
                if ks == 2 and n == 8 and early: early()
                if n >= 1 and R:
                    for r in R.pop(0): a.lgi(r, "F%d" % (ks+1))
                if n % ev == ev - 1 and q: q.pop(0)()
                n += 1
        assert not R
    assert not q
    E = []
    for P in range(3 if NT else 0):
        if P == 0: a.wvm(*["X%d" % k for k in range(K0, 20)])
        a.wlg("F%d" % (K0+P))
        R = treads(P+1) if P < 2 else []
        n = 0
        for j in range(NT):
            for sub in range(2):
                for mb in range(2):
                    mfma(2*P+sub, mb, tb(P) + 4*(2*j+sub), K0+j)
                    if R and n % 2 == 0:
                        for r in R.pop(0): a.lgi(r, "F%d" % (K0+P+1))
                    if n >= 2 and E: E.pop(0)()
                    n += 1
        assert not R and not E
        E = epi(P, 0, 96 + 8*(P & 1)) + epi(P, 1, 100 + 8*(P & 1))
    a.stamp(13)
    a("s_nop 7\ns_nop 3")
    if not NT: E = sum([epi(P, mb, FB + (P*2+mb)*4) for P in range(3) for mb in range(2)], [])
    for e in E: e()

def kd(name, vg, acc):
    return """.section .rodata,"a"
.p2align 6
.amdhsa_kernel %s
  .amdhsa_next_free_vgpr %d
  .amdhsa_next_free_sgpr 102
  .amdhsa_accum_offset %d
  .amdhsa_group_segment_fixed_size 0
  .amdhsa_kernarg_size 72
  .amdhsa_user_sgpr_count 2
  .amdhsa_user_sgpr_kernarg_segment_ptr 1
  .amdhsa_system_sgpr_workgroup_id_x 1
.end_amdhsa_kernel
""" % (name, vg, acc)
def head(name): return ".text\n.globl %s\n.p2align 8\n.type %s,@function\n%s:\n" % (name, name, name)
HDR = open("standalone__weight_only_int_quip__prompt.s.ref").read().split("; Override")[0] if len(sys.argv) > 0 else ""

FD, FT, FX = FL + 0x8000, FL + 0x10000, FL + 0x18000
SPIN = 20000
def poll_issue(a, r, n, soff):
    a("v_min_u32 v%d, %d, v1\nv_lshlrev_b32 v%d, 7, v%d" % (r+2, n-1, r+2, r+2))
    a.vmi("buffer_load_dwordx2 v[%d:%d], v%d, s[24:27], %s offen sc1" % (r, r+1, r+2, soff), "poll%d" % r)
def poll_check(a, r, soff):
    a.wvm("poll%d" % r)
    lp, ok = a.label("spin"), a.label("ok")
    a("s_movk_i32 s63, %d\n%s:" % (SPIN, lp))
    a("v_cmp_ne_u32 vcc, s80, v%d\nv_cmp_ne_u32 s[84:85], s62, v%d\ns_or_b64 vcc, vcc, s[84:85]\ns_cbranch_vccz %s" % (r, r+1, ok))
    a("s_sub_u32 s63, s63, 1\ns_cmp_eq_u32 s63, 0\ns_cbranch_scc1 %s" % ok)
    if a.opt.get("sleep"): a("s_sleep %d" % a.opt["sleep"])
    a("buffer_load_dwordx2 v[%d:%d], v%d, s[24:27], %s offen sc1\ns_waitcnt vmcnt(0)\ns_branch %s\n%s:" % (r, r+1, r+2, soff, lp, ok))
def flag_store(a, soff):
    l = a.label("nf")
    a("s_barrier\ns_cmp_lg_u32 s44, 0\ns_cbranch_scc1 %s" % l)
    a("v_mov_b32 v186, s80\nv_mov_b32 v187, s62\nv_mov_b32 v188, 0\ns_mov_b64 s[84:85], exec\ns_mov_b64 exec, 1")
    a("buffer_store_dwordx2 v[186:187], v188, s[24:27], %s offen sc1\ns_mov_b64 exec, s[84:85]\n%s:" % (soff, l))

NONCE = "s_waitcnt lgkmcnt(0)\ns_mul_i32 s80, s80, 0x9E3779B1\ns_add_u32 s80, s80, 0x7F4A7C15\ns_xor_b32 s62, s80, 0x5bd1e995\ns_mul_i32 s62, s62, 0x85EBCA6B"
def flag_addrs(a):
    y_coords(a)
    a("s_lshl_b32 s60, s81, 9\ns_add_u32 s60, s60, 0x%x" % FX)
    a("s_mul_i32 s61, s49, 3\ns_lshr_b32 s61, s61, 1\ns_lshl_b32 s61, s61, 10\ns_add_u32 s61, s61, 0x%x" % FT)
def x_touch(a, what):
    a("s_lshl_b32 s50, s46, 2\ns_add_u32 s50, s50, s44\ns_lshl_b32 s50, s50, 13\nv_lshlrev_b32 v189, 7, v1")
    if what & 1:
        srd(a, 96, 12, 640*640*2)
        a.vmi("buffer_load_dword v190, v189, s[96:99], s50 offen", "xt")
    if what & 2:
        srd(a, 96, 4, 2048*640*2)
        a("s_mul_i32 s51, s45, 327680\ns_min_u32 s50, s50, %d\ns_add_u32 s50, s50, s51" % (39*8192))
        l = a.label("nt")
        a("s_cmp_ge_u32 s46, 10\ns_cbranch_scc1 %s\nbuffer_load_dword v191, v189, s[96:99], s50 offen\n%s:" % (l, l))
def gen_persist(opt):
    out = HDR + "; @launch grid=(256,1,1) block=(256,1,1) lds=163840\n"
    out += '.amdgcn_target "amdgcn-amd-amdhsa--gfx950"\n'
    a = Asm(opt); sc = " sc1"
    prologue(a, 256, "L_end")
    a("s_cmp_ge_u32 s46, 24\ns_cbranch_scc1 L_x" if opt.get("mix", 1) else "s_cmp_ge_u32 s45, 6\ns_cbranch_scc1 L_x")
    t_coords(a); stage_d_addr(a); ptrs_ready(a); stage_d_loads(a); a.stamp(10, True); ws_setup(a); t_setup(a)
    vp = opt.get("vpre", 1)
    if opt.get("xtp") == 0: x_touch(a, opt["xt"])
    for st in range(vp): t_vload(a, st)
    flag_addrs(a); stage_d_raddr(a)
    if "at" in opt: a_touch_addr(a)
    a("s_mul_i32 s59, s47, 3072\ns_add_u32 s59, s59, 0x%x\ns_lshl_b32 s50, s48, 7\ns_add_u32 s58, s59, s50\ns_mul_i32 s50, s44, 768\ns_add_u32 s59, s59, s50" % FD)
    a("s_lshl_b32 s89, s48, 10\ns_lshl_b32 s50, s47, 7\ns_add_u32 s89, s89, s50\ns_add_u32 s89, s89, 0x%x" % FT)
    a(NONCE)
    stage_d_compute(a, sc)
    a.stamp(2)
    if opt.get("xtp") == 1: x_touch(a, opt["xt"])
    vm = opt.get("vmid", 4)
    for st in range(vp, vm): t_vload(a, st)
    a.wvm("dst")
    flag_store(a, "s58"); a.stamp(3)
    if opt.get("xtp") == 2: x_touch(a, opt["xt"])
    vl = opt.get("vlate", 8)
    for st in range(vm, vl): t_vload(a, st)
    ch = opt.get("ch", 0)
    if ch:
        ent = []
        for c in range(vl, RV, ch):
            poll_issue(a, 180, 6, "s59")
            for st in range(c, c+ch): t_vload(a, st)
            a.wvm("poll180")
            if c + ch >= RV: break
            a("v_cmp_ne_u32 vcc, s80, v180\nv_cmp_ne_u32 s[84:85], s62, v181\ns_or_b64 vcc, vcc, s[84:85]\ns_cbranch_vccz L_t%d" % (c+ch))
            ent.append((c+ch, list(a.vm), set(a.closed)))
        poll_check(a, 180, "s59")
        ent = [(RV, list(a.vm), set(a.closed))] + ent
        for i, (vd, vm, cl) in enumerate(ent):
            a.vm, a.closed, a.lg = vm, cl, []
            if i: a("L_t%d:" % vd)
            a.stamp(4)
            stage_t_main(a, sc, sc, vd, pre_store=lambda: poll_issue(a, 180, 4, "s60"))
            assert a.vm[-4:] == ["poll180", "tst", "tst", "tst"], a.vm
            if i + 1 < len(ent): a("s_mov_b32 s58, s89\ns_branch L_pub")
    else:
        poll_issue(a, 180, 6, "s59")
        vd = vl if opt.get("vcut") else RV
        for st in range(vl, vd): t_vload(a, st)
        poll_check(a, 180, "s59")
        a.stamp(4)
        stage_t_main(a, sc, sc, vd, pre_store=lambda: poll_issue(a, 180, 4, "s60"))
    a("s_mov_b32 s58, s89")
    assert a.vm[-4:] == ["poll180", "tst", "tst", "tst"], a.vm
    a("s_branch L_pub\nL_x:"); a.vm = []; a.lg = []
    stage_x(a, sc, pre_store=lambda: poll_issue(a, 180, 4, "s60"))
    a("s_lshl_b32 s58, s47, 9\ns_lshl_b32 s50, s48, 7\ns_add_u32 s58, s58, s50\ns_add_u32 s58, s58, 0x%x" % FX)
    a("L_pub:"); a.stamp(7)
    x0, x1, x2 = opt.get("x0", 0), opt.get("x1", 6), opt.get("x2", 10)
    if x0:
        a("s_mov_b32 s11, s58"); y_setup(a)
        a.vm = ["poll180"] + ["pst"]*3
        a.wvm("poll180")
        a("v_cmp_ne_u32 vcc, s80, v180\nv_cmp_ne_u32 s[84:85], s62, v181\ns_or_b64 vcc, vcc, s[84:85]\ns_cbranch_vccnz L_slow")
        a.stamp(9)
        for ks in range(x0): y_xload(a, ks, sc)
        a.wvm("pst"); a.stamp(8); vm1 = list(a.vm)
        flag_store(a, "s11"); a("s_branch L_merge\nL_slow:")
        a.wall(); a.stamp(8); flag_store(a, "s11"); poll_check(a, 180, "s60"); a.stamp(9)
        for ks in range(x0): y_xload(a, ks, sc)
        assert a.vm == vm1
        a("L_merge:")
    else:
        a.wall(); a.stamp(8)
        flag_store(a, "s58")
        y_setup(a)
        poll_check(a, 180, "s60"); a.stamp(9)
    for ks in range(x0, x1): y_xload(a, ks, sc)
    EP = "v_mov_b32 v186, s80\nv_mov_b32 v188, 0\ns_mov_b32 s60, 0x%x\ns_mov_b64 exec, 1\nbuffer_store_dword v186, v188, s[24:27], s60 offen sc1\ns_mov_b64 exec, -1" % FL
    a("s_or_b32 s54, s2, s44")
    def early():
        l = a.label("e2")
        a("s_cmp_lg_u32 s54, 0\ns_cbranch_scc1 %s\nv_cmp_ne_u32 vcc, s80, v180\nv_cmp_ne_u32 s[84:85], s62, v181\ns_or_b64 vcc, vcc, s[84:85]\ns_cbranch_vccnz %s" % (l, l))
        a(EP + "\ns_mov_b32 s54, 1\n%s:" % l)
    ych = opt.get("ych", x2 - x1); ent = []; c = x1
    while True:
        poll_issue(a, 180, 16, "s61")
        e = min(c + ych, x2)
        for ks in range(c, e): y_xload(a, ks, sc)
        if e >= x2: break
        a.wvm("poll180")
        a("v_cmp_ne_u32 vcc, s80, v180\nv_cmp_ne_u32 s[84:85], s62, v181\ns_or_b64 vcc, vcc, s[84:85]\ns_cbranch_vccz L_y%d" % e)
        ent.append((e, list(a.vm), set(a.closed))); c = e
    a.stamp(10)
    poll_check(a, 180, "s61")
    ent = [(x2, list(a.vm), set(a.closed))] + ent
    for i, (xd, vm, cl) in enumerate(ent):
        a.vm, a.closed, a.lg = vm, cl, []
        if i: a("L_y%d:" % xd)
        a.stamp(11)
        l = a.label("e1")
        a("s_cmp_lg_u32 s54, 0\ns_cbranch_scc1 %s\ns_mov_b32 s60, 0x%x" % (l, FX))
        poll_issue(a, 180, 64, "s60"); a.vm.pop()
        a("%s:" % l)
        stage_y_main(a, sc, xd, early)
        if i + 1 < len(ent): a("s_branch L_yend")
    a("L_yend:"); a.vm = []
    a("s_cmp_lg_u32 s54, 0\ns_cbranch_scc1 L_fin")
    a("s_mov_b32 s60, 0x%x" % FX)
    poll_issue(a, 180, 64, "s60"); a.wall(); poll_check(a, 180, "s60")
    a(EP)
    a("L_fin:"); a.stamp(14)
    if not opt.get("nowait") or opt.get("stamps"): a.wall()
    write_stamps(a, 0); a("L_end:\ns_endpgm")
    out += head(KN) + a.text() + kd(KN, 192+160, 192)
    return out

if __name__ == "__main__":
    opt = {}
    mode = sys.argv[1]; outp = sys.argv[2]
    for kv in sys.argv[3:]:
        k, v = kv.split("="); opt[k] = int(v) if v.lstrip("-").isdigit() else " " + v.replace("+", " ")
    open(outp, "w").write(globals()["gen_" + mode](opt))
```

```python
import sys
KN = "standalone__weight_only_int_quip__prompt_kernel"
WQ, TF, XF, FL, ST = 0x0, 0x200000, 0x400000, 0x700000, 0x780000
WS_BYTES = 0x800000

class Asm:
    def __init__(s, opt):
        s.L = []; s.vm = []; s.lg = []; s.opt = opt; s.nst = 0; s.uid = 0; s.closed = set()
    def __call__(s, t):
        for x in t.split("\n"):
            x = x.strip()
            if x: s.L.append(x if x.endswith(":") else "    " + x)
    def vmi(s, t, tag):
        assert tag not in s.closed, tag
        s(t); s.vm.append(tag)
    def lgi(s, t, tag): s(t); s.lg.append(tag)
    def _n(s, q, tags):
        idx = [i for i, t in enumerate(q) if t in tags]
        if not idx: return None
        n = len(q) - 1 - max(idx)
        del q[:max(idx) + 1]
        return n
    def wvm(s, *tags):
        s.closed.update(t for t in tags if not t.startswith('poll'))
        n = s._n(s.vm, tags)
        if n is not None: s("s_waitcnt vmcnt(%d)" % min(n, 63))
    def wlg(s, *tags):
        n = s._n(s.lg, tags)
        if n is not None: s("s_waitcnt lgkmcnt(%d)" % min(n, 15))
    def wall(s, vm=True, lg=True):
        s("s_waitcnt" + (" vmcnt(0)" if vm else "") + (" lgkmcnt(0)" if lg else ""))
        if vm: s.vm = []
        if lg: s.lg = []
    def stamp(s, i, early=False):
        if s.opt.get("st0") and i in (9, 10) and not early: return
        if early and not s.opt.get("st0"): return
        if s.opt.get("stamps"):
            s("s_memrealtime s[82:83]"); s.wall(vm=False); s("s_mov_b32 s%d, s82" % (64 + i))
    def label(s, b): s.uid += 1; return "L_%s_%d" % (b, s.uid)
    def text(s): return "\n".join(s.L) + "\n"

def srd(a, d, lo, nbytes):
    a("s_mov_b32 s%d, s%d\ns_and_b32 s%d, s%d, 0xffff\ns_mov_b32 s%d, 0x%x\ns_mov_b32 s%d, 0x20000" % (d, lo, d+1, lo+1, d+2, nbytes, d+3))

def prologue(a, nwg, end):
    a("s_cmp_ge_u32 s2, %d\ns_cbranch_scc1 %s" % (nwg, end))
    if a.opt.get("stamps"):
        for i in range(8): a("s_mov_b64 s[%d:%d], 0" % (64+2*i, 65+2*i))
    a.stamp(0)
    a("s_load_dwordx16 s[4:19], s[0:1], 0\ns_load_dwordx2 s[20:21], s[0:1], 64")
    a("v_lshrrev_b32 v2, 6, v0\nv_and_b32 v1, 63, v0\ns_and_b32 s45, s2, 7\nv_readfirstlane_b32 s44, v2\ns_lshr_b32 s46, s2, 3")
    if a.opt.get("xperm"): a("s_lshr_b32 s50, s45, 1\ns_and_b32 s50, s50, 2\ns_xor_b32 s45, s45, s50")
    a("v_lshlrev_b32 v10, 4, v1")
def ptrs_ready(a):
    a.stamp(9, True)
    a("s_waitcnt lgkmcnt(0)")
def ws_setup(a):
    srd(a, 24, 20, WS_BYTES)
    a("s_add_u32 s22, s20, 0x%x\ns_addc_u32 s23, s21, 0\ns_load_dword s80, s[22:23], 0" % FL)

def write_stamps(a, kidx):
    if not a.opt.get("stamps"): return
    a.stamp(15)
    l = a.label("nost")
    a("s_cmp_lg_u32 s44, 0\ns_cbranch_scc1 %s" % l)
    a("s_lshl_b32 s50, s2, 6\ns_add_u32 s50, s50, 0x%x" % (ST + kidx*0x4000))
    a("v_mov_b32 v2, 0")
    for i in range(4):
        for k in range(4): a("v_mov_b32 v%d, s%d" % (4+k, 64+4*i+k))
        a("buffer_store_dwordx4 v[4:7], v2, s[24:27], s50 offen offset:%d\ns_nop 1" % (16*i))
    a("s_waitcnt vmcnt(0)")
    if "pace" in a.opt:
        k = a.opt["pace"]; lp = a.label("pace")
        a("s_cmp_eq_u32 s%d, 0\ns_cselect_b32 s50, s64, s%d\ns_add_u32 s50, s50, 4000\n%s:\ns_sleep 2\ns_memrealtime s[82:83]\ns_waitcnt lgkmcnt(0)\ns_sub_u32 s51, s82, s50\ns_cmp_lt_i32 s51, 0\ns_cbranch_scc1 %s" % (64+k, 64+k, lp, lp))
    a("%s:" % l)

def t_coords(a):
    if a.opt.get("mix", 1):
        a("s_mul_i32 s50, s46, 43\ns_lshr_b32 s50, s50, 8\ns_mul_i32 s51, s50, 6\ns_sub_u32 s51, s46, s51")
        a("s_lshr_b32 s52, s45, 2\ns_lshl_b32 s47, s52, 2\ns_add_u32 s47, s47, s50\ns_and_b32 s48, s45, 3\ns_mul_i32 s48, s48, 6\ns_add_u32 s48, s48, s51")
        r = a.opt.get("rot", 1)
        a({2: "s_mov_b32 s51, 0", 3: "s_and_b32 s51, s51, 1", 4: "s_lshr_b32 s51, s51, 1"}.get(r, "s_lshl_b32 s51, s51, 1"))
        a("s_mul_i32 s91, s50, 3\ns_add_u32 s91, s91, s51\ns_add_u32 s91, s91, s52")
    else:
        a("s_cmp_ge_u32 s45, 3\ns_cselect_b32 s50, 1, 0\ns_mul_i32 s51, s50, 3\ns_sub_u32 s51, s45, s51")
        a("s_lshl_b32 s47, s50, 2\ns_lshr_b32 s52, s46, 3\ns_add_u32 s47, s47, s52")
        a("s_lshl_b32 s48, s51, 3\ns_and_b32 s52, s46, 7\ns_add_u32 s48, s48, s52")
        a("s_and_b32 s50, s47, 3\ns_mul_i32 s50, s50, 3\ns_and_b32 s51, s48, 7\ns_mul_i32 s51, s51, 3\ns_lshr_b32 s51, s51, 1\ns_add_u32 s91, s50, s51")
        if a.opt.get("rot", 1) == 2: a("s_lshr_b32 s51, s47, 2\ns_add_u32 s91, s50, s51")
    a("s_cmp_ge_u32 s91, 12\ns_cselect_b32 s51, 12, 0\ns_sub_u32 s91, s91, s51")
    if not a.opt.get("rot", 1): a("s_mov_b32 s91, 0")
def x_coords(a):
    if a.opt.get("mix", 1):
        a("s_sub_u32 s50, s46, 24\ns_lshr_b32 s51, s50, 2\ns_lshl_b32 s47, s45, 1\ns_add_u32 s47, s47, s51\ns_and_b32 s48, s50, 3")
        a("s_mul_i32 s91, s48, 5\ns_lshr_b32 s91, s91, 1\ns_mul_i32 s51, s51, 5\ns_add_u32 s91, s91, s51\ns_add_u32 s91, s91, s45")
        a("s_cmp_ge_u32 s91, 10\ns_cselect_b32 s51, 10, 0\ns_sub_u32 s91, s91, s51")
    else:
        a("s_sub_u32 s47, s45, 6\ns_lshl_b32 s47, s47, 3\ns_lshr_b32 s50, s46, 2\ns_add_u32 s47, s47, s50\ns_and_b32 s48, s46, 3")
        a("s_mul_i32 s50, s48, 5\ns_lshr_b32 s50, s50, 1\ns_and_b32 s51, s47, 7\ns_add_u32 s91, s50, s51")
    a("s_cmp_ge_u32 s91, 10\ns_cselect_b32 s51, 10, 0\ns_sub_u32 s91, s91, s51")
    if not a.opt.get("xrot", a.opt.get("rot", 1)): a("s_mov_b32 s91, 0")

RV = 10; WR = RV*4096; DL = 8*4096
def stage_d_addr(a):
    a("v_lshrrev_b32 v2, 4, v1\ns_mul_i32 s50, s44, 20\nv_add_u32 v2, s50, v2\nv_and_b32 v3, 15, v1\ns_movk_i32 s53, 6144")
    for p in range(5):
        a("v_add_u32 v4, %d, v2\nv_and_b32 v5, 15, v4\nv_xor_b32 v5, v5, v3\nv_mul_u32_u24 v4, s53, v4\nv_lshl_add_u32 v%d, v5, 4, v4" % (4*p, 152+p))
        if 0 < p < 4: a("v_subrev_u32 v%d, %d, v%d" % (152+p, 1024*p, 152+p))
    a("s_mul_i32 s51, s47, %d\ns_lshl_b32 s52, s48, 8\ns_add_u32 s92, s51, s52" % (80*6144))
    a("s_add_u32 m0, s57, %d" % DL)
    a("v_and_b32 v157, 48, v1")
    a("s_and_b32 s52, s44, 1\ns_lshl_b32 s52, s52, 6\ns_lshl_b32 s53, s48, 7\ns_add_u32 s52, s52, s53")
    for u in range(3):
        a("s_lshr_b32 s53, s44, 1\ns_add_u32 s53, s53, %d\ns_min_u32 s53, s53, 4\ns_mul_i32 s54, s47, 5\ns_add_u32 s53, s53, s54\ns_lshr_b32 s53, s53, 3" % (2*u))
        a("s_mul_i32 s53, s53, 3072\ns_add_u32 s%d, s53, s52" % (93+u))
        if a.opt.get("d2"):
            a("s_lshr_b32 s53, s44, 1\ns_add_u32 s53, s53, %d\ns_min_u32 s53, s53, 4\ns_add_u32 s53, s53, s54\ns_add_u32 s53, s53, 20\ns_lshr_b32 s53, s53, 3" % (2*u))
            a("s_mul_i32 s53, s53, 3072\ns_add_u32 s%d, s53, s52" % (96+u))
def stage_d_loads(a):
    if a.opt.get("szf"): sz_loads(a)
    srd(a, 28, 6, 640*1536*4)
    for p in range(5):
        if p == 4: a("s_add_u32 m0, s57, %d\ns_nop 0" % (DL + 4096))
        a.vmi("buffer_load_dwordx4 v%d, s[28:31], s92 offen offset:%d%s lds" % (152+p, 1024*(p & 3) if p < 4 else 0, a.opt.get("qnt", "")), "qw")
    if not a.opt.get("szf"): sz_loads(a)
    if a.opt.get("d2"):
        a("s_add_u32 s92, s92, %d" % (320*6144))
        for p in range(5):
            if p in (0, 4): a("s_add_u32 m0, s57, %d\ns_nop 0" % (DL - 8192 + p*1024))
            a.vmi("buffer_load_dwordx4 v%d, s[28:31], s92 offen offset:%d%s lds" % (152+p, 1024*(p & 3) if p < 4 else 0, a.opt.get("qnt", "")), "qw2")
        sz_loads(a, 1)
def sz_loads(a, k=0):
    if not k: srd(a, 36, 8, 5*1536*2); srd(a, 40, 10, 5*1536*2)
    for u in range(3):
        a.vmi("buffer_load_dwordx4 v[%d:%d], v157, s[36:39], s%d offen" % (128+32*k+8*u, 131+32*k+8*u, 93+3*k+u), "sz%d" % k)
        a.vmi("buffer_load_dwordx4 v[%d:%d], v157, s[40:43], s%d offen" % (132+32*k+8*u, 135+32*k+8*u, 93+3*k+u), "sz%d" % k)
def stage_d_raddr(a):
    a("v_and_b32 v11, 15, v1\nv_lshrrev_b32 v12, 4, v1\nv_lshlrev_b32 v12, 1, v12\ns_and_b32 s50, s44, 1\ns_lshl_b32 s50, s50, 3\nv_add_u32 v12, s50, v12\nv_xor_b32 v12, v12, v11")
    a("s_lshr_b32 s50, s44, 1\ns_lshl_b32 s50, s50, 4\nv_add_u32 v11, s50, v11\ns_movk_i32 s51, 3277\ns_mov_b32 s52, %d" % (WR - 5120))
    for u in range(3):
        a("v_add_u32 v13, %d, v11\nv_min_u32 v13, 79, v13\nv_mul_u32_u24 v14, s51, v13\nv_lshrrev_b32 v14, 16, v14\nv_mul_u32_u24 v14, s52, v14\nv_lshl_add_u32 v13, v13, 8, v14" % (32*u))
        a("v_add_u32 v13, %d, v13\nv_lshl_add_u32 v%d, v12, 4, v13\nv_xor_b32 v%d, 16, v%d" % (DL - 8192, 152+2*u, 153+2*u, 152+2*u))
    a("s_mul_i32 s50, s47, 5\ns_lshr_b32 s51, s44, 1\ns_add_u32 s50, s50, s51\ns_mul_i32 s50, s50, 48\ns_lshl_b32 s51, s48, 1\ns_add_u32 s50, s50, s51")
    a("s_and_b32 s51, s44, 1\ns_add_u32 s50, s50, s51\ns_lshl_b32 s50, s50, 10\ns_add_u32 s92, s50, %d\ns_add_u32 s93, s92, %d\ns_add_u32 s94, s92, %d" % (WQ, 96*1024, 192*1024))
def stage_d_compute(a, sc, k=0):
    def prep(u):
        s0, z0, t = 128+32*k+8*u, 132+32*k+8*u, 48+16*u
        for j in range(4):
            a("v_lshlrev_b32 v%d, 16, v%d\nv_and_b32 v%d, 0xffff0000, v%d" % (t+2*j, s0+j, t+2*j+1, s0+j))
            a("v_lshlrev_b32 v%d, 16, v%d\nv_and_b32 v%d, 0xffff0000, v%d" % (t+8+2*j, z0+j, t+8+2*j+1, z0+j))
        for j in range(0, 8, 2):
            a("v_pk_mul_f32 v[%d:%d], v[%d:%d], v[%d:%d] neg_lo:[1,0] neg_hi:[1,0]" % (t+8+j, t+9+j, t+8+j, t+9+j, t+j, t+j+1))
    pre = a.opt.get("szf")
    if pre: a.wvm("sz%d" % k); prep(0); prep(1); prep(2); a.wvm("qw2" if k else "qw")
    else: a.wvm("qw2" if k else "qw", "sz%d" % k); prep(0)
    a("s_barrier")
    if not k: a.stamp(1)
    for u in range(3):
        q = 16 + 8*u
        a.lgi("ds_read_b128 v[%d:%d], v%d offset:%d" % (q, q+3, 152+2*u, 8192*(1-k)), "dq%d" % u)
        a.lgi("ds_read_b128 v[%d:%d], v%d offset:%d" % (q+4, q+7, 153+2*u, 8192*(1-k)), "dq%d" % u)
    if k: a("s_add_u32 s92, s92, %d\ns_add_u32 s93, s93, %d\ns_add_u32 s94, s94, %d" % ((20*48*1024,)*3))
    skip = a.label("dskip")
    for u in range(3):
        q = 16 + 8*u; t = 48+16*u; o = 100 + 4*u + 12*k
        if u == 2: a.wlg("dq2"); a("s_cmp_ge_u32 s44, 2\ns_cbranch_scc1 %s" % skip)
        if u and not pre: prep(u)
        a.wlg("dq%d" % u)
        for j in range(8): a("v_cvt_f32_i32 v%d, v%d" % (q+j, q+j))
        for j in range(0, 8, 2): a("v_pk_fma_f32 v[%d:%d], v[%d:%d], v[%d:%d], v[%d:%d]" % (q+j, q+j+1, q+j, q+j+1, t+j, t+j+1, t+8+j, t+9+j))
        for j in range(4): a("v_cvt_pk_bf16_f32 v%d, v%d, v%d" % (o+j, q+2*j, q+2*j+1))
        a("buffer_store_dwordx4 v[%d:%d], v10, s[24:27], s%d offen%s" % (o, o+3, 92+u, sc))
        if u < 2: a.vm.append("dst")
    a("%s:" % skip)

def t_setup(a):
    srd(a, 32, 14, 1536*1536*2)
    a("v_lshrrev_b32 v6, 3, v1\nv_and_b32 v7, 7, v1\nv_lshrrev_b32 v8, 2, v1\nv_and_b32 v8, 4, v8\nv_xor_b32 v7, v7, v8")
    a("s_movk_i32 s50, 3072\nv_mul_u32_u24 v6, s50, v6\nv_lshl_add_u32 v2, v7, 4, v6")
    for p in range(1, 4): a("v_add_u32 v%d, %d, v2" % (2+p, p*(24576-1024)))
    a("v_lshrrev_b32 v11, 4, v1\nv_lshlrev_b32 v11, 3, v11\nv_bfe_u32 v12, v1, 2, 2\nv_add_u32 v11, v11, v12\nv_lshlrev_b32 v11, 7, v11")
    a("v_and_b32 v12, 3, v1\nv_lshrrev_b32 v13, 1, v1\nv_and_b32 v13, 4, v13\nv_xor_b32 v12, v12, v13\nv_lshl_add_u32 v11, v12, 4, v11")
    a("s_mov_b32 s53, s57")
    for b in range(4):
        a("s_add_u32 s50, s44, %d\ns_and_b32 s51, s50, 1\ns_lshl_b32 s51, s51, 3\ns_add_u32 s51, s51, s53\ns_and_b32 s50, s50, 2\ns_lshl_b32 s50, s50, 5" % b)
        a("v_xor_b32 v%d, s50, v11\nv_add_u32 v%d, s51, v%d" % (6+b, 6+b, 6+b))
    a("s_mul_i32 s55, s44, %d\ns_lshl_b32 s50, s48, 7\ns_add_u32 s55, s55, s50" % (12*32*3072))
    a("s_mul_i32 s56, s47, %d\ns_mul_i32 s50, s44, %d\ns_add_u32 s56, s56, s50\ns_add_u32 s56, s56, %d" % (5*48*1024, 12*1024, WQ))
    a("s_mov_b32 s50, s91")
    a("s_mul_i32 s86, s50, 98304\ns_add_u32 s86, s86, s55\ns_add_u32 s87, s55, %d\ns_lshl_b32 s88, s50, 10\ns_add_u32 s88, s88, s56\ns_add_u32 s90, s56, 12288" % (12*98304))
def t_vload1(a, s, p, setm0=True):
    if p == 0 and s > 0: a("s_add_u32 s86, s86, 98304\ns_cmp_eq_u32 s86, s87\ns_cselect_b32 s86, s55, s86")
    if setm0: a("s_add_u32 m0, s57, %d\ns_nop 0" % ((s % RV)*4096))
    a.vmi("buffer_load_dwordx4 v%d, s[32:35], s86 offen offset:%d%s lds" % (2+p, 1024*p, a.opt.get("vnt", "")), "V%d" % s)
def t_vload(a, s):
    for p in range(4): t_vload1(a, s, p, p == 0)
def t_aload1(a, s, b, sc):
    NA = a.opt.get("na", 4)
    r = (s % NA)*20 + 4*b
    if a.opt.get("adiag") and s >= NA: return
    if b == 0 and s > 0: a("s_add_u32 s88, s88, 1024\ns_cmp_eq_u32 s88, s90\ns_cselect_b32 s88, s56, s88")
    if b: a("s_add_u32 s50, s88, %d" % (b*48*1024))
    a.vmi("buffer_load_dwordx4 a[%d:%d], v10, s[24:27], %s offen%s" % (r, r+3, "s50" if b else "s88", sc), "A%d" % s)
def a_touch_addr(a):
    at = a.opt["at"]; skip = max(0, (12-at)*40 - 384)
    a("s_mul_i32 s50, s46, 43\ns_lshr_b32 s50, s50, 8\ns_mul_i32 s50, s50, 6\ns_sub_u32 s50, s46, s50\ns_lshl_b32 s50, s50, 6\ns_add_u32 s50, s50, %d" % (at*40))
    a("v_add_u32 v184, s50, v1\nv_min_u32 v184, 479, v184\ns_movk_i32 s50, 1639\nv_mul_u32_u24 v185, s50, v184\nv_lshrrev_b32 v185, 16, v185\nv_mul_u32_u24 v183, 40, v185\nv_sub_u32 v184, v184, v183")
    a("v_add_u32 v185, s91, v185\nv_subrev_u32 v183, 12, v185\nv_min_u32 v185, v185, v183\nv_lshlrev_b32 v185, 10, v185")
    a("v_lshrrev_b32 v183, 3, v184\nv_and_b32 v184, 7, v184\nv_lshl_add_u32 v185, v184, 7, v185\ns_mov_b32 s50, 49152\nv_mul_u32_u24 v183, s50, v183\nv_add_u32 v185, v185, v183")
def t_bread(a, s, b, t):
    r = 96 + (s & 1)*16 + 4*b + 2*t
    a.lgi("ds_read_b64_tr_b16 v[%d:%d], v%d offset:%d" % (r, r+1, 6+b, (s % RV)*4096 + t*512), "B%d" % s)
def stage_t_main(a, ldsc, stsc, vdone, pre_store=None):
    ACC = 16
    NA = a.opt.get("na", 4)
    vin = a.opt.get("vin", 0)
    for s in range(RV):
        if s >= vdone and (not vin or s < a.opt.get("vmin", 0)): t_vload(a, s)
        if s == a.opt.get("at", -1): a.vmi("buffer_load_dword v184, v185, s[24:27], s56 offen%s" % ldsc, "at")
        if s < NA:
            for b in range(5): t_aload1(a, s, b, ldsc)
    a.wvm("V0")
    for b in range(4):
        for t in range(2): t_bread(a, 0, b, t)
    vq = [(s, p) for s in range(max(vdone, a.opt.get('vmin', 0)) if vin else RV, 12) for p in range(4)]
    a("v_add_u32 v11, s57, v10")
    for b in range(1, 4):
        a("s_sub_u32 s50, s44, %d\ns_and_b32 s50, s50, 3\ns_mul_i32 s50, s50, %d\ns_add_u32 s50, s50, %d\nv_add_u32 v%d, s50, v10" % (b, WR, (b-1)*5120, 11+b))
    for s in range(12):
        a.wvm("A%d" % s, "V%d" % (s+1)); a.wlg("B%d" % s)
        if s == 0: a.stamp(5)
        order = [(b, db) for db in range(5) for b in range(4)] if s < 11 else [(b, db) for b in (1, 2, 3, 0) for db in range(5)]
        for n, (b, db) in enumerate(order):
            c = ACC + (b*5+db)*4; ar = (s % NA)*20 + 4*db; br = 96 + (s & 1)*16 + 4*b
            a("v_mfma_f32_16x16x32_bf16 v[%d:%d], a[%d:%d], v[%d:%d], %s" % (c, c+3, ar, ar+3, br, br+3, "0" if s == 0 else "v[%d:%d]" % (c, c+3)))
            if s+1 < 12 and n < 16 and (n & 1) == 0: t_bread(a, s+1, n >> 2, (n >> 1) & 1)
            if b == 3 and s + NA < 12: t_aload1(a, s+NA, db, ldsc)
            if b == 1 and db in ((0, 1, 2, 3) if vin == 1 else (0, 1, 2, 3, 4) if vin else (1, 3)) and vq and vq[0][0] - RV <= s: t_vload1(a, *vq.pop(0))
            if s == 11 and n >= 8:
                wb, wd = order[n-8]; c = ACC + (wb*5+wd)*4
                a.lgi("ds_write_b128 v11, v[%d:%d] offset:%d" % (c, c+3, (wb-1)*5120 + wd*1024), "rw")
    assert not vq
    a("s_nop 1")
    for wb, wd in order[12:15]:
        c = ACC + (wb*5+wd)*4
        a.lgi("ds_write_b128 v11, v[%d:%d] offset:%d" % (c, c+3, (wb-1)*5120 + wd*1024), "rw")
    a.wall(vm=False); a("s_barrier")
    a.stamp(6)
    for db in range(5):
        for b in range(3):
            r = 36 + (db*3+b)*4
            a.lgi("ds_read_b128 v[%d:%d], v%d offset:%d" % (r, r+3, 12+b, db*1024), "rr%d" % db)
    if pre_store: pre_store()
    a("s_lshl_b32 s50, s48, 2\ns_add_u32 s50, s50, s44\ns_mul_i32 s50, s50, 20\ns_lshr_b32 s51, s47, 1\ns_mul_i32 s51, s51, 5\ns_add_u32 s50, s50, s51")
    a("s_lshl_b32 s50, s50, 10\ns_add_u32 s50, s50, %d\ns_and_b32 s51, s47, 1\ns_lshl_b32 s52, s51, 11\ns_add_u32 s52, s52, s50" % TF)
    a("s_lshl_b32 s51, s51, 9\ns_add_u32 s51, s51, s50\ns_add_u32 s51, s51, 4096\nv_lshlrev_b32 v3, 3, v1")
    for db in range(5):
        a.wlg("rr%d" % db)
        c = ACC + db*4; r = 36 + db*12
        for k in range(0, 4, 2):
            a("v_pk_add_f32 v[%d:%d], v[%d:%d], v[%d:%d]" % (c+k, c+k+1, c+k, c+k+1, r+k, r+k+1))
            a("v_pk_add_f32 v[%d:%d], v[%d:%d], v[%d:%d]" % (r+4+k, r+5+k, r+4+k, r+5+k, r+8+k, r+9+k))
        for k in range(0, 4, 2):
            a("v_pk_add_f32 v[%d:%d], v[%d:%d], v[%d:%d]" % (c+k, c+k+1, c+k, c+k+1, r+4+k, r+5+k))
        o = 96 + 2*db
        a("v_cvt_pk_bf16_f32 v%d, v%d, v%d\nv_cvt_pk_bf16_f32 v%d, v%d, v%d" % (o, c, c+1, o+1, c+2, c+3))
        if db in (1, 3): a.vmi("buffer_store_dwordx4 v[%d:%d], v10, s[24:27], s52 offen offset:%d%s" % (o-2, o+1, (db >> 1)*1024, stsc), "tst")
        if db == 4: a.vmi("buffer_store_dwordx2 v[%d:%d], v3, s[24:27], s51 offen%s" % (o, o+1, stsc), "tst")

XS = 36864
def stage_x(a, stsc, pre_store=None):
    x_coords(a)
    a("s_movk_i32 s53, 1280\nv_lshrrev_b32 v11, 3, v1\ns_lshl_b32 s50, s44, 5\nv_add_u32 v11, s50, v11\nv_and_b32 v12, 7, v1\nv_lshrrev_b32 v13, 4, v1")
    for p in range(4):
        a("v_add_u32 v14, %d, v13\nv_and_b32 v14, 7, v14\nv_xor_b32 v14, v14, v12\nv_add_u32 v15, %d, v11\nv_mul_u32_u24 v15, s53, v15" % (4*p, 8*p))
        a("v_lshl_add_u32 v%d, v14, 4, v15" % (2+p))
        if p: a("v_subrev_u32 v%d, %d, v%d" % (2+p, 1024*p, 2+p))
    a("s_movk_i32 s54, 3277\ns_lshl_b32 s50, s44, 4")
    UR = [6, 7, 8, 9, 11]
    for p in range(5):
        a("v_add_u32 v12, %d, v1\nv_mul_u32_u24 v13, s54, v12\nv_lshrrev_b32 v13, 16, v13\nv_mul_u32_u24 v14, 20, v13\nv_sub_u32 v12, v12, v14" % (64*p))
        a("v_lshrrev_b32 v14, 2, v13\nv_and_b32 v14, 2, v14\nv_xor_b32 v12, v12, v14\nv_add_u32 v13, s50, v13\nv_mul_u32_u24 v13, s53, v13\nv_lshl_add_u32 v%d, v12, 4, v13" % UR[p])
        if 0 < p < 4: a("v_subrev_u32 v%d, %d, v%d" % (UR[p], 1024*p, UR[p]))
    a("s_mul_i32 s55, s47, %d\ns_mul_i32 s56, s48, 320\ns_lshl_b32 s57, s44, 12\ns_mul_i32 s58, s44, 5120\ns_add_u32 s58, s58, 16384" % (128*1280))
    a("s_mov_b32 s50, s91")
    a("s_lshl_b32 s86, s50, 7\ns_add_u32 s86, s86, s55\ns_add_u32 s87, s55, 1280\ns_mul_i32 s88, s50, 81920\ns_add_u32 s88, s88, s56\ns_add_u32 s90, s56, 819200")
    def dma1(st, i):
        sl = (st % 4)*XS
        if i < 4:
            if i == 0 and st > 0: a("s_add_u32 s86, s86, 128\ns_cmp_eq_u32 s86, s87\ns_cselect_b32 s86, s55, s86")
            a("s_add_u32 m0, s57, %d\ns_nop 0" % sl)
            a.vmi("buffer_load_dwordx4 v%d, s[28:31], s86 offen offset:%d%s lds" % (2+i, 1024*i, a.opt.get("xnt", "")), "S%d" % st)
        else:
            p = i - 4
            if p == 0 and st > 0: a("s_add_u32 s88, s88, 81920\ns_cmp_eq_u32 s88, s90\ns_cselect_b32 s88, s56, s88")
            a("s_add_u32 m0, s58, %d\ns_nop 0" % (sl + (4096 if p == 4 else 0)))
            a.vmi("buffer_load_dwordx4 v%d, s[32:35], s88 offen offset:%d%s lds" % (UR[p], 1024*(p & 3) if p < 4 else 0, a.opt.get("unt", "")), "S%d" % st)
    def dma(st):
        for i in range(9): dma1(st, i)
    ptrs_ready(a); srd(a, 28, 4, 2048*640*2); srd(a, 32, 12, 640*640*2)
    XP = a.opt.get('xpre', 2)
    for st in range(XP): dma(st)
    a.stamp(10, True)
    dq = [(st, i) for st in range(XP, 10) for i in range(9)]
    free = 4
    ws_setup(a); flag_addrs(a)
    a("v_and_b32 v12, 15, v1\nv_lshrrev_b32 v13, 4, v1\nv_lshrrev_b32 v14, 1, v12\nv_xor_b32 v14, v14, v13\ns_lshr_b32 s50, s44, 1\ns_lshl_b32 s50, s50, 13")
    a("v_lshlrev_b32 v12, 7, v12\nv_lshl_add_u32 v12, v14, 4, v12\nv_add_u32 v176, s50, v12\nv_xor_b32 v177, 64, v176")
    a("v_add_u32 v178, %d, v176\nv_add_u32 v179, %d, v177" % (2*XS, 2*XS))
    a("v_lshlrev_b32 v12, 3, v13\nv_bfe_u32 v14, v1, 2, 2\nv_add_u32 v12, v12, v14\ns_movk_i32 s50, 320\nv_mul_u32_u24 v12, s50, v12\nv_and_b32 v14, 3, v1\nv_lshl_add_u32 v12, v14, 3, v12")
    a("s_and_b32 s50, s44, 1\ns_mul_i32 s51, s50, 160\ns_add_u32 s51, s51, 16384\nv_add_u32 v12, s51, v12\nv_and_b32 v13, 1, v13\nv_lshlrev_b32 v13, 5, v13")
    a("s_lshl_b32 s50, s50, 1\ns_sub_u32 s50, 1, s50\nv_mul_lo_u32 v13, v13, s50\nv_add_u32 v180, v12, v13\nv_sub_u32 v181, v12, v13")
    a("v_add_u32 v182, %d, v180\nv_add_u32 v183, %d, v181" % (2*XS, 2*XS))
    ACC = 16; FB = 96
    def reads(u):
        st, k = u >> 1, u & 1; sl = st % 4; hi = (sl >> 1)*2; lo = (sl & 1)*XS; fb = FB + 36*(u & 1)
        R = []
        for i in range(5):
            if i < 4: R.append("ds_read_b128 v[%d:%d], v%d offset:%d" % (fb+4*i, fb+4*i+3, 176+hi+k, lo + i*2048))
            for t in range(2):
                r = fb + 16 + 4*i + 2*t
                R.append("ds_read_b64_tr_b16 v[%d:%d], v%d offset:%d" % (r, r+1, 180+hi+(i & 1), lo + (32*k+4*t)*320 + 32*i))
        return R
    a(NONCE); a.wvm("S0"); a("s_barrier")
    a.stamp(1)
    for r in reads(0): a.lgi(r, "F0")
    for u in range(20):
        a.wlg("F%d" % u)
        R = reads(u+1) if u < 19 else []
        fb = FB + 36*(u & 1); n = 0
        for eb in range(5):
            for mb in range(4):
                c = ACC + (eb*4+mb)*4; ar = fb + 16 + 4*eb; br = fb + 4*mb
                a("v_mfma_f32_16x16x32_bf16 v[%d:%d], v[%d:%d], v[%d:%d], %s" % (c, c+3, ar, ar+3, br, br+3, "0" if u == 0 else "v[%d:%d]" % (c, c+3)))
                if n == 1 and (u & 1) and u < 19:
                    st = u >> 1
                    a.wvm("S%d" % (st+1)); a("s_nop 0" if a.opt.get("xnobar") else "s_barrier"); free = st + 5
                if n >= 1 and R:
                    r = R.pop(0)
                    if not a.opt.get("xnoread"): a.lgi(r, "F%d" % (u+1))
                if n % a.opt.get('xev', 4) == a.opt.get('xev', 4) - 1 and dq and dq[0][0] < free:
                    d = dq.pop(0)
                    if not a.opt.get("xnodma"): dma1(*d)
                n += 1
        assert not R
    a.stamp(6)
    assert not dq
    if pre_store: pre_store()
    a("s_lshl_b32 s50, s47, 3\ns_lshr_b32 s51, s44, 1\ns_lshl_b32 s51, s51, 2\ns_add_u32 s50, s50, s51\ns_mul_i32 s50, s50, 20\ns_mul_i32 s51, s48, 5\ns_add_u32 s50, s50, s51")
    a("s_lshl_b32 s50, s50, 10\ns_add_u32 s50, s50, %d\ns_and_b32 s51, s44, 1\ns_lshl_b32 s52, s51, 11\ns_add_u32 s52, s52, s50" % XF)
    a("s_lshl_b32 s51, s51, 9\ns_add_u32 s51, s51, s50\ns_add_u32 s51, s51, 4096\nv_lshlrev_b32 v3, 3, v1\ns_nop 3")
    for mb in range(4):
        o = 96 + 12*mb
        for eb in range(5):
            c = ACC + (eb*4+mb)*4
            a("v_cvt_pk_bf16_f32 v%d, v%d, v%d\nv_cvt_pk_bf16_f32 v%d, v%d, v%d" % (o+2*eb, c, c+1, o+2*eb+1, c+2, c+3))
            if eb in (1, 3): a.vmi("buffer_store_dwordx4 v[%d:%d], v10, s[24:27], s52 offen offset:%d%s" % (o+2*eb-2, o+2*eb+1, (eb >> 1)*1024, stsc), "xst")
            if eb == 4: a.vmi("buffer_store_dwordx2 v[%d:%d], v3, s[24:27], s51 offen%s" % (o+8, o+9, stsc), "xst")
        if mb < 3: a("s_add_u32 s52, s52, 20480\ns_add_u32 s51, s51, 20480")

def y_coords(a):
    a("s_lshr_b32 s81, s45, 1\ns_lshl_b32 s81, s81, 2\ns_lshr_b32 s50, s46, 3\ns_add_u32 s81, s81, s50")
    a("s_and_b32 s49, s45, 1\ns_lshl_b32 s49, s49, 3\ns_and_b32 s50, s46, 7\ns_add_u32 s49, s49, s50")
def y_setup(a):
    a("s_mov_b32 s47, s81\ns_mov_b32 s48, s49")
    srd(a, 28, 16, 2048*1536*2)
    a("v_lshlrev_b32 v11, 3, v1\nv_add_u32 v12, 4096, v11\nv_add_u32 v13, 61440, v10\nv_add_u32 v14, 61440, v11")
    a("s_lshl_b32 s55, s47, 3\ns_lshl_b32 s50, s44, 1\ns_add_u32 s55, s55, s50\ns_mul_i32 s55, s55, 20480\ns_add_u32 s55, s55, %d" % XF)
    a("s_mul_i32 s56, s48, 122880\ns_add_u32 s56, s56, %d" % TF)
    for i in range(3):
        a("s_mul_i32 s50, s44, 3\ns_add_u32 s50, s50, %d\ns_and_b32 s51, s50, 1\ns_lshr_b32 s50, s50, 1\ns_mul_i32 s50, s50, 20480\ns_lshl_b32 s51, s51, 10\ns_add_u32 s%d, s50, s51" % (i, 57+i))
def y_xload1(a, ks, mb, sc):
    G, r = divmod(ks, 5)
    d = (ks*2+mb)*4
    a("s_add_u32 s50, s55, %d" % (mb*20480 + G*5120))
    if r < 4: a.vmi("buffer_load_dwordx4 a[%d:%d], v10, s[24:27], s50 offen offset:%d%s" % (d, d+3, r*1024, sc), "X%d" % ks)
    else:
        for h in range(2): a.vmi("buffer_load_dwordx2 a[%d:%d], v12, s[24:27], s50 offen offset:%d%s" % (d+2*h, d+2*h+1, h*512, sc), "X%d" % ks)
def y_xload(a, ks, sc):
    for mb in range(2): y_xload1(a, ks, mb, sc)
def y_tload1(a, st, i, sc):
    a("s_add_u32 m0, s%d, %d\ns_add_u32 s50, s56, m0" % (57+i, st*2048))
    a.vmi("buffer_load_dwordx4 v10, s[24:27], s50 offen%s lds" % sc, "T%d" % st)
def stage_y_main(a, sc, xdone, early=None):
    ACC = 16; FB = 64
    NT = a.opt.get("ytail", 0); K0 = 20 - NT
    q = [(min(2*st, K0) - 1.5, lambda st=st, i=i: y_tload1(a, st, i, sc)) for st in range(10) for i in range(3)]
    q += [(min(ks, K0) - a.opt.get("xlead", 0), lambda ks=ks, mb=mb: y_xload1(a, ks, mb, sc)) for ks in range(xdone, 20) for mb in range(2)]
    q = [f for d, f in sorted(q, key=lambda e: e[0])]
    for i in range(a.opt.get("ypre", 6)): q.pop(0)()
    ev = a.opt.get("yev", 4 if xdone >= 10 else 3)
    def rd(r, nb, ks): return "ds_read_b128 v[%d:%d], v%d offset:%d" % (r, r+3, 10 if nb < 3 else 13, (nb % 3)*20480 + ks*1024)
    def rd2(r, nb, ks):
        if ks % 5 < 4: return [rd(r, nb, ks)]
        return ["ds_read_b64 v[%d:%d], v%d offset:%d" % (r+2*h, r+2*h+1, 11 if nb < 3 else 14, (nb % 3)*20480 + ks*1024 + 512*h) for h in range(2)]
    def reads(ks): return [rd2(FB + 24*(ks & 1) + 4*nb, nb, ks) for nb in range(6)]
    def tb(P): return 112 + 8*NT*(P & 1)
    def treads(P): return [rd2(tb(P) + 4*(2*j+sub), 2*P+sub, K0+j) for j in range(NT) for sub in range(2)]
    def epi_addr():
        a("v_and_b32 v2, 15, v1\nv_lshrrev_b32 v3, 4, v1\ns_movk_i32 s52, 3072\nv_mul_u32_u24 v2, s52, v2\nv_lshl_add_u32 v2, v3, 4, v2")
        a("s_lshl_b32 s52, s47, 2\ns_add_u32 s52, s52, s44\ns_mul_i32 s52, s52, %d\ns_mul_i32 s53, s48, 192\ns_add_u32 s52, s52, s53\ns_add_u32 s53, s52, %d" % (32*3072, 16*3072))
    def epi(P, mb, o):
        E = []
        for sub in range(2):
            c = ACC + ((2*P+sub)*2+mb)*4
            E.append(lambda c=c, sub=sub: a("v_cvt_pk_bf16_f32 v%d, v%d, v%d\nv_cvt_pk_bf16_f32 v%d, v%d, v%d" % (o+2*sub, c, c+1, o+2*sub+1, c+2, c+3)))
        E.append(lambda: a.vmi("buffer_store_dwordx4 v[%d:%d], v2, s[28:31], s%d offen offset:%d%s" % (o, o+3, 52+mb, 64*P, a.opt.get("ysc", "")), "yst"))
        return E
    def mfma(nb, mb, ar, ks):
        c = ACC + (nb*2+mb)*4; br = (ks*2+mb)*4
        a("v_mfma_f32_16x16x32_bf16 v[%d:%d], v[%d:%d], a[%d:%d], %s" % (c, c+3, ar, ar+3, br, br+3, "0" if ks == 0 else "v[%d:%d]" % (c, c+3)))
    epi_addr()
    a.wvm("T0"); a("s_barrier")
    a.stamp(12)
    for rr in reads(0):
        for r in rr: a.lgi(r, "F0")
    for ks in range(K0):
        a.wvm("X%d" % ks); a.wlg("F%d" % ks)
        R = reads(ks+1) if ks < K0-1 else treads(0) if NT else []
        fb = FB + 24*(ks & 1); n = 0
        for nb in range(6):
            for mb in range(2):
                mfma(nb, mb, fb + 4*nb, ks)
                if n == 1 and (ks & 1) and ks < 19:
                    a.wvm(*["T%d" % t for t in (range((ks >> 1)+1, 10) if ks == K0-1 else [(ks >> 1)+1])]); a("s_barrier")
                if ks in (13, 17) and n == 8 and early: early(ks == 17)
                if n >= 1 and R:
                    for r in R.pop(0): a.lgi(r, "F%d" % (ks+1))
                if n % ev == ev - 1 and q: q.pop(0)()
                n += 1
        assert not R
    assert not q
    E = []
    for P in range(3 if NT else 0):
        if P == 0: a.wvm(*["X%d" % k for k in range(K0, 20)])
        a.wlg("F%d" % (K0+P))
        R = treads(P+1) if P < 2 else []
        n = 0
        for j in range(NT):
            for sub in range(2):
                for mb in range(2):
                    mfma(2*P+sub, mb, tb(P) + 4*(2*j+sub), K0+j)
                    if R and n % 2 == 0:
                        for r in R.pop(0): a.lgi(r, "F%d" % (K0+P+1))
                    if n >= 2 and E: E.pop(0)()
                    n += 1
        assert not R and not E
        E = epi(P, 0, 96 + 8*(P & 1)) + epi(P, 1, 100 + 8*(P & 1))
    a.stamp(13)
    a("s_nop 7\ns_nop 3")
    if not NT: E = sum([epi(P, mb, FB + (P*2+mb)*4) for P in range(3) for mb in range(2)], [])
    for e in E: e()

def kd(name, vg, acc):
    return """.section .rodata,"a"
.p2align 6
.amdhsa_kernel %s
  .amdhsa_next_free_vgpr %d
  .amdhsa_next_free_sgpr 102
  .amdhsa_accum_offset %d
  .amdhsa_group_segment_fixed_size 0
  .amdhsa_kernarg_size 72
  .amdhsa_user_sgpr_count 2
  .amdhsa_user_sgpr_kernarg_segment_ptr 1
  .amdhsa_system_sgpr_workgroup_id_x 1
.end_amdhsa_kernel
""" % (name, vg, acc)
def head(name): return ".text\n.globl %s\n.p2align 8\n.type %s,@function\n%s:\n" % (name, name, name)
HDR = open("standalone__weight_only_int_quip__prompt.s.ref").read().split("; Override")[0] if len(sys.argv) > 0 else ""

FD, FT, FX = FL + 0x8000, FL + 0x10000, FL + 0x18000
SPIN = 20000
def poll_issue(a, r, n, soff):
    a("v_min_u32 v%d, %d, v1\nv_lshlrev_b32 v%d, 7, v%d" % (r+2, n-1, r+2, r+2))
    a.vmi("buffer_load_dwordx2 v[%d:%d], v%d, s[24:27], %s offen sc1" % (r, r+1, r+2, soff), "poll%d" % r)
def poll_check(a, r, soff):
    a.wvm("poll%d" % r)
    lp, ok = a.label("spin"), a.label("ok")
    a("s_movk_i32 s63, %d\n%s:" % (SPIN, lp))
    a("v_cmp_ne_u32 vcc, s80, v%d\nv_cmp_ne_u32 s[84:85], s62, v%d\ns_or_b64 vcc, vcc, s[84:85]\ns_cbranch_vccz %s" % (r, r+1, ok))
    a("s_sub_u32 s63, s63, 1\ns_cmp_eq_u32 s63, 0\ns_cbranch_scc1 %s" % ok)
    if a.opt.get("sleep"): a("s_sleep %d" % a.opt["sleep"])
    a("buffer_load_dwordx2 v[%d:%d], v%d, s[24:27], %s offen sc1\ns_waitcnt vmcnt(0)\ns_branch %s\n%s:" % (r, r+1, r+2, soff, lp, ok))
def flag_store(a, soff, second=None):
    l = a.label("nf")
    a("s_barrier\ns_cmp_lg_u32 s44, 0\ns_cbranch_scc1 %s" % l)
    a("v_mov_b32 v186, s80\nv_mov_b32 v187, s62\nv_mov_b32 v188, 0\ns_mov_b64 s[84:85], exec\ns_mov_b64 exec, 1")
    if second: a("s_add_u32 s50, %s, %d\nbuffer_store_dwordx2 v[186:187], v188, s[24:27], s50 offen sc1" % (soff, second))
    a("buffer_store_dwordx2 v[186:187], v188, s[24:27], %s offen sc1\ns_mov_b64 exec, s[84:85]\n%s:" % (soff, l))

NONCE = "s_waitcnt lgkmcnt(0)\ns_mul_i32 s80, s80, 0x9E3779B1\ns_add_u32 s80, s80, 0x7F4A7C15\ns_xor_b32 s62, s80, 0x5bd1e995\ns_mul_i32 s62, s62, 0x85EBCA6B"
def flag_addrs(a):
    y_coords(a)
    a("s_lshl_b32 s60, s81, 9\ns_add_u32 s60, s60, 0x%x" % FX)
    a("s_mul_i32 s61, s49, 3\ns_lshr_b32 s61, s61, 1\ns_lshl_b32 s61, s61, 10\ns_add_u32 s61, s61, 0x%x" % FT)
def x_touch(a, what):
    a("s_lshl_b32 s50, s46, 2\ns_add_u32 s50, s50, s44\ns_lshl_b32 s50, s50, 13\nv_lshlrev_b32 v189, 7, v1")
    if what & 1:
        srd(a, 96, 12, 640*640*2)
        a.vmi("buffer_load_dword v190, v189, s[96:99], s50 offen", "xt")
    if what & 2:
        srd(a, 96, 4, 2048*640*2)
        a("s_mul_i32 s51, s45, 327680\ns_min_u32 s50, s50, %d\ns_add_u32 s50, s50, s51" % (39*8192))
        l = a.label("nt")
        a("s_cmp_ge_u32 s46, 10\ns_cbranch_scc1 %s\nbuffer_load_dword v191, v189, s[96:99], s50 offen\n%s:" % (l, l))
def gen_persist(opt):
    out = HDR + "; @launch grid=(256,1,1) block=(256,1,1) lds=163840\n"
    out += '.amdgcn_target "amdgcn-amd-amdhsa--gfx950"\n'
    a = Asm(opt); sc = " sc1"
    prologue(a, 256, "L_end")
    a("s_cmp_ge_u32 s46, 24\ns_cbranch_scc1 L_x" if opt.get("mix", 1) else "s_cmp_ge_u32 s45, 6\ns_cbranch_scc1 L_x")
    d2 = opt.get("d2")
    t_coords(a); a("s_mul_i32 s57, s44, %d" % WR)
    if d2: a("s_cmp_ge_u32 s45, 4\ns_cbranch_scc1 L_nod")
    stage_d_addr(a); ptrs_ready(a); stage_d_loads(a); a.stamp(10, True); ws_setup(a); t_setup(a)
    vp = opt.get("vpre", 1)
    if opt.get("xtp") == 0: x_touch(a, opt["xt"])
    for st in range(vp): t_vload(a, st)
    flag_addrs(a); stage_d_raddr(a)
    if "at" in opt: a_touch_addr(a)
    a("s_mul_i32 s59, s47, 3072\ns_add_u32 s59, s59, 0x%x\ns_lshl_b32 s50, s48, 7\ns_add_u32 s58, s59, s50\ns_mul_i32 s50, s44, 768\ns_add_u32 s59, s59, s50" % FD)
    a("s_lshl_b32 s89, s48, 10\ns_lshl_b32 s50, s47, 7\ns_add_u32 s89, s89, s50\ns_add_u32 s89, s89, 0x%x" % FT)
    a(NONCE)
    stage_d_compute(a, sc)
    if d2: stage_d_compute(a, sc, 1)
    a.stamp(2)
    if opt.get("xtp") == 1: x_touch(a, opt["xt"])
    vm = opt.get("vmid", 4)
    for st in range(vp, vm): t_vload(a, st)
    a.wvm("dst")
    flag_store(a, "s58", 4*3072 if d2 else None); a.stamp(3)
    if opt.get("xtp") == 2: x_touch(a, opt["xt"])
    vl = opt.get("vlate", 8)
    for st in range(vm, vl): t_vload(a, st)
    if d2:
        a("s_branch L_dj\nL_nod:"); a.vm = []; a.closed = set()
        ptrs_ready(a); t_setup(a)
        for st in range(opt.get("v2", 3)): t_vload(a, st)
        ws_setup(a); flag_addrs(a)
        a("s_mul_i32 s59, s47, 3072\ns_add_u32 s59, s59, 0x%x\ns_lshl_b32 s50, s48, 7\ns_add_u32 s58, s59, s50\ns_mul_i32 s50, s44, 768\ns_add_u32 s59, s59, s50" % FD)
        a("s_lshl_b32 s89, s48, 10\ns_lshl_b32 s50, s47, 7\ns_add_u32 s89, s89, s50\ns_add_u32 s89, s89, 0x%x" % FT)
        for st in range(opt.get("v2", 3), vl): t_vload(a, st)
        a(NONCE); a.stamp(2); a("L_dj:")
    ch = opt.get("ch", 0)
    if ch:
        ent = []
        for c in range(vl, RV, ch):
            poll_issue(a, 180, 6, "s59")
            for st in range(c, c+ch): t_vload(a, st)
            a.wvm("poll180")
            if c + ch >= RV: break
            a("v_cmp_ne_u32 vcc, s80, v180\nv_cmp_ne_u32 s[84:85], s62, v181\ns_or_b64 vcc, vcc, s[84:85]\ns_cbranch_vccz L_t%d" % (c+ch))
            ent.append((c+ch, list(a.vm), set(a.closed)))
        poll_check(a, 180, "s59")
        ent = [(RV, list(a.vm), set(a.closed))] + ent
        for i, (vd, vm, cl) in enumerate(ent):
            a.vm, a.closed, a.lg = vm, cl, []
            if i: a("L_t%d:" % vd)
            a.stamp(4)
            stage_t_main(a, sc, sc, vd, pre_store=lambda: poll_issue(a, 180, 4, "s60"))
            assert a.vm[-4:] == ["poll180", "tst", "tst", "tst"], a.vm
            if i + 1 < len(ent): a("s_mov_b32 s58, s89\ns_branch L_pub")
    else:
        poll_issue(a, 180, 6, "s59")
        vd = vl if opt.get("vcut") else RV
        for st in range(vl, vd): t_vload(a, st)
        poll_check(a, 180, "s59")
        a.stamp(4)
        stage_t_main(a, sc, sc, vd, pre_store=lambda: poll_issue(a, 180, 4, "s60"))
    a("s_mov_b32 s58, s89")
    assert a.vm[-4:] == ["poll180", "tst", "tst", "tst"], a.vm
    a("s_branch L_pub\nL_x:"); a.vm = []; a.lg = []
    stage_x(a, sc, pre_store=lambda: poll_issue(a, 180, 4, "s60"))
    a("s_lshl_b32 s58, s47, 9\ns_lshl_b32 s50, s48, 7\ns_add_u32 s58, s58, s50\ns_add_u32 s58, s58, 0x%x" % FX)
    a("L_pub:"); a.stamp(7)
    x0, x1, x2 = opt.get("x0", 0), opt.get("x1", 6), opt.get("x2", 10)
    if x0:
        a("s_mov_b32 s11, s58"); y_setup(a)
        a.vm = ["poll180"] + ["pst"]*3
        a.wvm("poll180")
        a("v_cmp_ne_u32 vcc, s80, v180\nv_cmp_ne_u32 s[84:85], s62, v181\ns_or_b64 vcc, vcc, s[84:85]\ns_cbranch_vccnz L_slow")
        a.stamp(9)
        for ks in range(x0): y_xload(a, ks, sc)
        a.wvm("pst"); a.stamp(8); vm1 = list(a.vm)
        flag_store(a, "s11"); a("s_branch L_merge\nL_slow:")
        a.wall(); a.stamp(8); flag_store(a, "s11"); poll_check(a, 180, "s60"); a.stamp(9)
        for ks in range(x0): y_xload(a, ks, sc)
        assert a.vm == vm1
        a("L_merge:")
    else:
        a.wall(); a.stamp(8)
        flag_store(a, "s58")
        y_setup(a)
        poll_check(a, 180, "s60"); a.stamp(9)
    for ks in range(x0, x1): y_xload(a, ks, sc)
    EP = "v_mov_b32 v186, s80\nv_mov_b32 v188, 0\ns_mov_b32 s60, 0x%x\ns_mov_b64 exec, 1\nbuffer_store_dword v186, v188, s[24:27], s60 offen sc1\ns_mov_b64 exec, -1" % FL
    a("s_or_b32 s54, s2, s44")
    GR = [FX, FT, FT + 8192, FT + 16384]
    def early(ph):
        l = a.label("e2")
        a("s_cmp_lg_u32 s54, 0\ns_cbranch_scc1 %s" % l)
        if ph == 0:
            a("v_lshlrev_b32 v176, 7, v1")
            for g in range(4): a("s_mov_b32 s60, 0x%x\nbuffer_load_dwordx2 v[%d:%d], v176, s[24:27], s60 offen sc1" % (GR[g], 168+2*g, 169+2*g))
        else:
            a("s_waitcnt vmcnt(0)")
            for g in range(4): a("v_cmp_ne_u32 vcc, s80, v%d\nv_cmp_ne_u32 s[84:85], s62, v%d\ns_or_b64 vcc, vcc, s[84:85]\ns_cbranch_vccnz %s" % (168+2*g, 169+2*g, l))
            a(EP + "\ns_mov_b32 s54, 1")
        a("%s:" % l)
    ych = opt.get("ych", x2 - x1); ent = []; c = x1
    while True:
        poll_issue(a, 180, 16, "s61")
        e = min(c + ych, x2)
        for ks in range(c, e): y_xload(a, ks, sc)
        if e >= x2: break
        a.wvm("poll180")
        a("v_cmp_ne_u32 vcc, s80, v180\nv_cmp_ne_u32 s[84:85], s62, v181\ns_or_b64 vcc, vcc, s[84:85]\ns_cbranch_vccz L_y%d" % e)
        ent.append((e, list(a.vm), set(a.closed))); c = e
    a.stamp(10)
    poll_check(a, 180, "s61")
    ent = [(x2, list(a.vm), set(a.closed))] + ent
    for i, (xd, vm, cl) in enumerate(ent):
        a.vm, a.closed, a.lg = vm, cl, []
        if i: a("L_y%d:" % xd)
        a.stamp(11)
        stage_y_main(a, sc, xd, early)
        if i + 1 < len(ent): a("s_branch L_yend")
    a("L_yend:"); a.vm = []
    a("s_cmp_lg_u32 s54, 0\ns_cbranch_scc1 L_fin")
    for g in GR:
        a("s_mov_b32 s60, 0x%x" % g)
        poll_issue(a, 180, 64, "s60"); a.wall(); poll_check(a, 180, "s60")
    a(EP)
    a("L_fin:"); a.stamp(14)
    if not opt.get("nowait") or opt.get("stamps"): a.wall()
    write_stamps(a, 0); a("L_end:\ns_endpgm")
    out += head(KN) + a.text() + kd(KN, 192+160, 192)
    return out

if __name__ == "__main__":
    opt = {}
    mode = sys.argv[1]; outp = sys.argv[2]
    for kv in sys.argv[3:]:
        k, v = kv.split("="); opt[k] = int(v) if v.lstrip("-").isdigit() else " " + v.replace("+", " ")
    open(outp, "w").write(globals()["gen_" + mode](opt))
```
